```python
import torch

def _softmax(x, axis=-1):
    return torch.softmax(x, dim=axis)
def _gelu(x):
    return torch.nn.functional.gelu(x, approximate="tanh")
def _silu(x):
    return torch.nn.functional.silu(x)
def _sigmoid(x):
    return torch.sigmoid(x)
def _layernorm(x, axis=-1, eps=1e-5):
    m = x.mean(dim=axis, keepdim=True)
    v = x.var(dim=axis, keepdim=True, unbiased=False)
    return (x - m) / torch.sqrt(v + eps)
def _scatter_add(tgt, idx, src, axis=0):
    return tgt.clone().index_add_(axis, idx, src)
def _segment_sum(src, seg, n):
    out = torch.zeros((n,) + src.shape[1:], dtype=src.dtype)
    return out.index_add_(0, seg, src)
def _pad(x, pw):
    flat = tuple(v for pair in reversed(pw) for v in pair)
    return torch.nn.functional.pad(x, flat)

kernel_name = 'gated_mix__ssm_conv_s4__swiglu_ffn__prompt'

def setup_inputs():

    _w = (lambda a: (lambda t: t.to(torch.bfloat16) if t.is_floating_point() else t)(torch.as_tensor(a)))
    def _A_setup():
        B, L, D, N = 1, 2048, 576, 128
        A_re = -(lambda _x: torch.exp(torch.as_tensor(_x)))((lambda *s: torch.randn(*s, dtype=torch.bfloat16) * 3.2)(D, N))
        A_im = torch.pi * (lambda *s: torch.randn(*s, dtype=torch.bfloat16) * 0.05)(D, N)
        B_re = (lambda *s: torch.randn(*s, dtype=torch.bfloat16) * 0.1)(D, N)
        B_im = (lambda *s: torch.randn(*s, dtype=torch.bfloat16) * 0.1)(D, N)
        C_re = (lambda *s: torch.randn(*s, dtype=torch.bfloat16) * 0.1)(D, N)
        C_im = (lambda *s: torch.randn(*s, dtype=torch.bfloat16) * 0.1)(D, N)
        log_dt = (lambda *s: torch.randn(*s, dtype=torch.bfloat16) * 0.05)(D) * 0.5 - 4.0
        Dskip = (lambda *s: torch.randn(*s, dtype=torch.bfloat16) * 0.05)(D)
        return {
            "u": _w((lambda *s: torch.randn(*s, dtype=torch.bfloat16) * 0.05)(B, L, D)),
            "A_re": _w(A_re),
            "A_im": _w(A_im),
            "B_re": _w(B_re),
            "B_im": _w(B_im),
            "C_re": _w(C_re),
            "C_im": _w(C_im),
            "log_dt": _w(log_dt),
            "Dskip": _w(Dskip),
        }
    _A_in = _A_setup()

    def _B_setup():
        B, S, D, F = 1, 2048, 576, 4608
        return {
            "x": _w((lambda *s: torch.randn(*s, dtype=torch.bfloat16) * 0.05)(B, S, D)),
            "w_gate": _w((lambda *s: torch.randn(*s, dtype=torch.bfloat16) * 0.05)(D, F)),
            "w_up": _w((lambda *s: torch.randn(*s, dtype=torch.bfloat16) * 0.05)(D, F)),
            "w_down": _w((lambda *s: torch.randn(*s, dtype=torch.bfloat16) * 0.05)(F, D)),
        }
    _B_in = _B_setup()

    return {
        "A_u": _A_in["u"],
        "A_A_re": _A_in["A_re"],
        "A_A_im": _A_in["A_im"],
        "A_B_re": _A_in["B_re"],
        "A_B_im": _A_in["B_im"],
        "A_C_re": _A_in["C_re"],
        "A_C_im": _A_in["C_im"],
        "A_log_dt": _A_in["log_dt"],
        "A_Dskip": _A_in["Dskip"],
        "B_x": _B_in["x"],
        "B_w_gate": _B_in["w_gate"],
        "B_w_up": _B_in["w_up"],
        "B_w_down": _B_in["w_down"],
        "gate_w": _w((lambda *s: torch.randn(*s, dtype=torch.bfloat16) * 0.05)(576) * 16.0),
    }

def reference(A_u, A_A_re, A_A_im, A_B_re, A_B_im, A_C_re, A_C_im, A_log_dt, A_Dskip, B_x, B_w_gate, B_w_up, B_w_down, gate_w):
    def _A_ref(u, A_re, A_im, B_re, B_im, C_re, C_im, log_dt, Dskip):
        Bsz, L, D = u.shape
        dt = torch.exp(log_dt)[:, None]
        A = A_re + 1j * A_im
        Bc = B_re + 1j * B_im
        Cc = C_re + 1j * C_im
        logdA = dt * A
        dB = dt * Bc
        l = (lambda x, dt: x.to(dt))(torch.arange(L), A_re.dtype)
        P = torch.exp(logdA[:, :, None] * l[None, None, :])
        K = torch.einsum("dn,dnl,dn->dl", Cc, P, dB).real
        L2 = 2 * L
        Kp = _pad(K, ((0, 0), (0, L)))
        up = (lambda x, *d: x.permute(*d))(u, 0, 2, 1)
        up = _pad(up, ((0, 0), (0, 0), (0, L)))
        Kf = (lambda x, axes=(-2,-1): torch.fft.rfft2(x.float(), dim=axes))(Kp[:, None, :], axes=(-2, -1))
        Uf = (lambda x, axes=(-2,-1): torch.fft.rfft2(x.float(), dim=axes))(up[:, :, None, :], axes=(-2, -1))
        Yf = Uf * Kf[None, :, :, :]
        y = (lambda x, s, axes=(-2,-1): torch.fft.irfft2(x, s=s, dim=axes).to(torch.bfloat16))(Yf, (1, L2), axes=(-2, -1))[:, :, 0, :L]
        y = (lambda x, *d: x.permute(*d))(y, 0, 2, 1) + u * Dskip[None, None, :]
        return y

    def _B_ref(x, w_gate, w_up, w_down):
        g = _silu(x @ w_gate)
        u = x @ w_up
        return (g * u) @ w_down

    x = A_u
    g = _sigmoid((x * gate_w).sum(-1, keepdims=True))
    a = _A_ref(x, A_A_re, A_A_im, A_B_re, A_B_im, A_C_re, A_C_im, A_log_dt, A_Dskip)
    b = _B_ref(x, B_w_gate, B_w_up, B_w_down)
    return g * a + (1 - g) * b
```

```python
class A:
    def __init__(s):
        s.l=[]; s.vm=[]
        s.lg=[]
    def __call__(s,t):
        for x in t.split("\n"):
            x=x.strip()
            if x: s.l.append(x)
    def c(s,t): s.l.append("; "+t)
    def vmem(s,t,tag=None): s(t); s.vm.append(tag)
    def wait_vm(s,tag):
        idx=[i for i,x in enumerate(s.vm) if x==tag]
        if not idx: return
        n=len(s.vm)-1-idx[-1]
        assert n<=63,(n,tag)
        s(f"s_waitcnt vmcnt({n})"); s.vm=s.vm[idx[-1]+1:]
    def wait_vm_all(s): s("s_waitcnt vmcnt(0)"); s.vm=[]
    def lds(s,t,tag=None): s(t); s.lg.append(tag)
    def wait_lg(s,tag):
        idx=[i for i,x in enumerate(s.lg) if x==tag]
        if not idx: return
        n=len(s.lg)-1-idx[-1]
        if n>15: n=15
        assert len(s.lg)-1-idx[-1]<=15,(tag,len(s.lg))
        s(f"s_waitcnt lgkmcnt({n})"); s.lg=s.lg[idx[-1]+1:]
    def wait_lg_all(s): s("s_waitcnt lgkmcnt(0)"); s.lg=[]
    def text(s): return "\n".join(s.l)+"\n"
def vr(b,n=1): return f"v{b}" if n==1 else f"v[{b}:{b+n-1}]"
def sr(b,n=1): return f"s{b}" if n==1 else f"s[{b}:{b+n-1}]"
def srd(a,d,ptr,nbytes,add=0):
    if add:
        a(f"s_add_u32 s{d}, s{ptr}, {add:#x}\ns_addc_u32 s{d+1}, s{ptr+1}, 0")
    else:
        a(f"s_mov_b32 s{d}, s{ptr}\ns_mov_b32 s{d+1}, s{ptr+1}")
    a(f"s_mov_b32 s{d+2}, {nbytes:#x}\ns_mov_b32 s{d+3}, 0x20000")
def kernel_head(name): return f".globl {name}\n.p2align 8\n.type {name},@function\n{name}:\n"
def kernel_desc(name,vg=256,sg=102):
    return f""".p2align 6
.amdhsa_kernel {name}
  .amdhsa_next_free_vgpr {vg}
  .amdhsa_next_free_sgpr {sg}
  .amdhsa_accum_offset {min(256,(vg+3)//4*4)}
  .amdhsa_group_segment_fixed_size 0
  .amdhsa_kernarg_size 136
  .amdhsa_user_sgpr_count 2
  .amdhsa_user_sgpr_kernarg_segment_ptr 1
  .amdhsa_system_sgpr_workgroup_id_x 1
  .amdhsa_float_denorm_mode_32 3
.end_amdhsa_kernel
"""
import struct
def f2u(x): return struct.unpack("<I",struct.pack("<f",x))[0]
```

```python
from asmlib import *
import math
H_OFF=0; H_SZ=2048*4608*2
XT_OFF=0x1200000; AT_OFF=0x1440000; T_SZ=0x240000
G_OFF=0x1680000; TS_OFF=0x1700000
LOG2E=1.4426950408889634
BIG=0x40000000
P_X,P_ARE,P_AIM,P_BRE,P_BIM,P_CRE,P_CIM,P_LDT=4,6,8,10,12,14,16,18
P_DSK,P_BX,P_WG,P_WU,P_WD,P_GW,P_OUT,P_DBG,P_WS=20,22,24,26,28,30,32,34,36
SW=38
def prologue(a,nwg,endlabel):
    a(f"s_cmp_ge_u32 s2, {nwg}\ns_cbranch_scc1 {endlabel}")
    a("s_load_dwordx16 s[4:19], s[0:1], 0\ns_load_dwordx16 s[20:35], s[0:1], 64\ns_load_dwordx2 s[36:37], s[0:1], 128")
    a(f"v_lshrrev_b32 v1, 6, v0\nv_and_b32 v0, 63, v0\ns_nop 0\nv_readfirstlane_b32 s{SW}, v1")
    a("s_waitcnt lgkmcnt(0)")
def stamp(a,slot,sbase=90,vt=(1,2)):
    a(f"s_memrealtime s[{sbase}:{sbase+1}]\ns_lshl_b32 s{sbase+2}, s2, 7\ns_lshl_b32 s{sbase+3}, s{SW}, 15\ns_add_u32 s{sbase+2}, s{sbase+2}, s{sbase+3}")
    a(f"s_add_u32 s{sbase+2}, s{sbase+2}, {TS_OFF+slot*4:#x}\ns_waitcnt lgkmcnt(0)")
    a(f"v_mov_b32 v{vt[0]}, s{sbase+2}\nv_mov_b32 v{vt[1]}, s{sbase}")
    a.vmem(f"global_store_dword v{vt[0]}, v{vt[1]}, s[{P_WS}:{P_WS+1}]","stamp")

def prep_g_issue(a,sX,sGW,v):
    a(f"s_lshl_b32 s60, s2, 3\ns_add_u32 s60, s60, s{SW}\ns_mul_i32 s61, s60, 1152")
    a(f"v_lshlrev_b32 v{v}, 4, v0\nv_add_u32 v{v+1}, 1024, v{v}\nv_cmp_gt_u32 vcc, 8, v0\nv_mov_b32 v{v+2}, {BIG:#x}\ns_nop 0\nv_cndmask_b32 v{v+1}, v{v+2}, v{v+1}, vcc")
    a.vmem(f"buffer_load_dwordx4 {vr(v+2,4)}, v{v}, {sr(sX,4)}, s61 offen","g")
    a.vmem(f"buffer_load_dwordx4 {vr(v+6,4)}, v{v+1}, {sr(sX,4)}, s61 offen","g")
    a.vmem(f"buffer_load_dwordx4 {vr(v+10,4)}, v{v}, {sr(sGW,4)}, 0 offen","g")
    a.vmem(f"buffer_load_dwordx4 {vr(v+14,4)}, v{v+1}, {sr(sGW,4)}, 0 offen","g")
def prep_g_finish(a,sG,v,sc=""):
    a.wait_vm("g")
    a(f"v_mov_b32 v{v}, 0")
    for i in range(8): a(f"v_dot2c_f32_bf16 v{v}, v{v+2+i}, v{v+10+i}")
    a("s_nop 2")
    for m in ["row_shr:1 row_mask:0xf","row_shr:2 row_mask:0xf","row_shr:4 row_mask:0xf","row_shr:8 row_mask:0xf","row_bcast:15 row_mask:0xa","row_bcast:31 row_mask:0xc"]:
        a(f"v_add_f32_dpp v{v}, v{v}, v{v} {m} bank_mask:0xf\ns_nop 1")
    a(f"v_mul_f32 v{v}, {f2u(-LOG2E):#x}, v{v}\nv_exp_f32 v{v}, v{v}\ns_nop 0\nv_add_f32 v{v}, 1.0, v{v}\nv_rcp_f32 v{v}, v{v}")
    a(f"s_lshl_b32 s61, s60, 2\nv_mov_b32 v{v+1}, {BIG:#x}\nv_cmp_eq_u32 vcc, 63, v0\ns_nop 1\nv_cndmask_b32 v{v+1}, v{v+1}, 0, vcc")
    a.vmem(f"buffer_store_dword v{v}, v{v+1}, {sr(sG,4)}, s61 offen {sc}","gst")
def prep_xt_issue(a,sX,v,ldsbase):
    a(f"s_mul_hi_u32 s62, s2, {(2**32+8)//9:#x}\ns_mul_i32 s63, s62, 9\ns_sub_u32 s63, s2, s63")
    a(f"s_mul_i32 s64, s62, {128*1152}\ns_lshl_b32 s65, s63, 7\ns_add_u32 s64, s64, s65\ns_mul_i32 s65, s{SW}, {16*1152}\ns_add_u32 s64, s64, s65")
    a(f"v_lshrrev_b32 v{v}, 3, v0\nv_and_b32 v{v+1}, 7, v0\nv_bfe_u32 v{v+2}, v0, 4, 1\nv_xor_b32 v{v+1}, v{v+1}, v{v+2}")
    a(f"s_lshl_b32 s65, s{SW}, 2\ns_and_b32 s65, s65, 4")
    a(f"v_xor_b32 v{v+1}, s65, v{v+1}\nv_xor_b32 v{v+2}, 2, v{v+1}")
    a(f"v_mul_u32_u24 v{v}, 1152, v{v}\nv_lshl_add_u32 v{v+1}, v{v+1}, 4, v{v}\nv_lshl_add_u32 v{v+2}, v{v+2}, 4, v{v}\nv_add_u32 v{v+2}, {8*1152-1024}, v{v+2}")
    a(f"s_lshl_b32 s65, s{SW}, 11\ns_add_u32 m0, s65, {ldsbase}\ns_nop 0")
    a.vmem(f"buffer_load_dwordx4 v{v+1}, {sr(sX,4)}, s64 offen lds","xt")
    a.vmem(f"buffer_load_dwordx4 v{v+2}, {sr(sX,4)}, s64 offen offset:1024 lds","xt")
def prep_xt_finish(a,sXT,v,ldsbase,sc=""):
    a(f"v_bfe_u32 v{v}, v0, 2, 2\nv_and_b32 v{v+1}, 3, v0\nv_lshrrev_b32 v{v+2}, 4, v0")
    a(f"v_lshl_add_u32 v{v+3}, v{v+2}, 2, v{v+1}")
    a(f"v_lshl_add_u32 v{v+3}, v{v+3}, 3, v{v}")
    a(f"v_lshrrev_b32 v{v+4}, 1, v{v}\nv_lshl_or_b32 v{v+4}, v{v+1}, 1, v{v+4}\nv_xor_b32 v{v+4}, s{SW}, v{v+4}")
    a(f"v_lshlrev_b32 v{v+4}, 4, v{v+4}\nv_lshl_add_u32 v{v+3}, v{v+3}, 7, v{v+4}")
    for u in range(2):
        a.lds(f"ds_read_b64_tr_b16 {vr(v+4+4*u,2)}, v{v+3} offset:{ldsbase+8*u}","xt")
        a.lds(f"ds_read_b64_tr_b16 {vr(v+6+4*u,2)}, v{v+3} offset:{ldsbase+8*u+512}","xt")
    a(f"v_lshl_add_u32 v{v+2}, v{v+2}, 2, v{v}\nv_lshlrev_b32 v{v+2}, 4, v{v+2}\nv_lshl_add_u32 v{v+2}, v{v+1}, 12, v{v+2}")
    a(f"s_lshl_b32 s64, s63, 18\ns_lshl_b32 s65, s{SW}, 15\ns_add_u32 s64, s64, s65\ns_lshl_b32 s65, s62, 8\ns_add_u32 s64, s64, s65\ns_add_u32 s65, s64, 0x4000")
    a.wait_lg("xt")
    a.vmem(f"buffer_store_dwordx4 {vr(v+4,4)}, v{v+2}, {sr(sXT,4)}, s64 offen {sc}","xtst")
    a.vmem(f"buffer_store_dwordx4 {vr(v+8,4)}, v{v+2}, {sr(sXT,4)}, s65 offen {sc}","xtst")

XF=112; ACC=[48,80]; FR=32
VA0,VA1,VOW0,VOW1,VOX0,VOX1,VOH,VAH=2,3,4,5,6,7,8,9
VXR=80
VT=12
VP=20
S_X,S_W,S_H=40,44,48
S_MI,S_FJ,S_MW,S_FH,S_LINE,S_LINEH,S_M0,S_T,S_FC,S_FCH=52,53,54,55,56,57,58,59,66,67
SLOT=16384
def phaseA_setup(a):
    a(f"""s_and_b32 s60, s2, 7
    s_lshr_b32 s61, s2, 3
    s_and_b32 s62, s60, 1
    s_lshl_b32 s62, s62, 3
    s_and_b32 s63, s61, 7
    s_add_u32 s{S_MI}, s62, s63
    s_lshr_b32 s62, s60, 1
    s_lshl_b32 s62, s62, 2
    s_lshr_b32 s63, s61, 3
    s_add_u32 s{S_FJ}, s62, s63
    s_and_b32 s{S_MW}, s{SW}, 3
    s_lshr_b32 s{S_FH}, s{SW}, 2""")
    srd(a,S_X,P_X,2048*1152)
    a(f"s_cmp_eq_u32 s{S_FH}, 0\ns_cselect_b32 s{S_W}, s{P_WG}, s{P_WU}\ns_cselect_b32 s{S_W+1}, s{P_WG+1}, s{P_WU+1}\ns_mov_b32 s{S_W+2}, {576*9216:#x}\ns_mov_b32 s{S_W+3}, 0x20000")
    srd(a,S_H,P_WS,H_SZ,H_OFF)
    a(f"""s_and_b32 s60, s{S_FJ}, 1
    s_mul_i32 s61, s{S_FJ}, 9
    s_add_u32 s62, s61, s60
    s_lshl_b32 s{S_LINE}, s62, 6
    s_add_u32 s63, s{S_LINE}, 512
    s_sub_u32 s64, s{S_LINE}, 128
    s_cmp_eq_u32 s60, 0
    s_cselect_b32 s{S_LINEH}, s63, s64
    s_add_u32 s62, s62, s{S_FH}
    s_lshl_b32 s{S_FC}, s62, 10
    s_lshl_b32 s64, s{S_FH}, 9""")
    a(f"""s_add_u32 s63, s61, 8
    s_cmp_eq_u32 s60, 0
    s_cselect_b32 s63, s63, s61
    s_lshl_b32 s63, s63, 10
    s_add_u32 s{S_FCH}, s63, s64
    s_lshl_b32 s{S_M0}, s{SW}, 11""")
    a(f"""v_lshrrev_b32 v10, 3, v0
    v_bfe_u32 v11, v0, 1, 2
    v_bfe_u32 v12, v0, 4, 1
    v_xor_b32 v11, v11, v12
    s_lshl_b32 s60, s{S_FH}, 1
    v_xor_b32 v11, s60, v11
    v_and_b32 v12, 1, v0
    v_lshlrev_b32 v12, 4, v12
    v_lshl_add_u32 v11, v11, 5, v12
    s_lshl_b32 s60, s{S_MW}, 4
    v_add_u32 v12, s60, v10
    v_mul_u32_u24 v12, 9216, v12
    v_add_u32 v{VOW0}, v11, v12
    v_add_u32 v{VOW1}, {8*9216-1024}, v{VOW0}""")
    a(f"""s_lshl_b32 s60, s{S_MI}, 7
    s_lshl_b32 s61, s{SW}, 4
    s_add_u32 s60, s60, s61
    v_add_u32 v12, s60, v10
    v_mul_u32_u24 v12, 1152, v12
    v_and_b32 v11, 7, v0
    v_lshrrev_b32 v13, 4, v0
    v_xor_b32 v11, v11, v13
    v_lshl_add_u32 v{VOX0}, v11, 4, v12
    v_xor_b32 v11, 4, v11
    v_lshl_add_u32 v{VOX1}, v11, 4, v12
    v_add_u32 v{VOX1}, {8*1152-1024}, v{VOX1}""")
def phaseA_setup2(a):
    a(f"""v_bfe_u32 v10, v0, 4, 1
    v_lshrrev_b32 v11, 5, v0
    v_bfe_u32 v12, v0, 2, 2
    v_and_b32 v13, 3, v0
    v_lshl_add_u32 v14, v11, 3, v12
    v_lshlrev_b32 v14, 7, v14
    v_lshl_add_u32 v14, v10, 13, v14
    v_lshl_add_u32 v14, v13, 3, v14
    v_lshrrev_b32 v12, 1, v12
    v_lshl_or_b32 v12, v10, 1, v12
    s_lshl_b32 s60, s{S_FH}, 1
    v_xor_b32 v15, s60, v12
    v_lshl_add_u32 v{VA0}, v15, 5, v14
    v_xor_b32 v15, 1, v15
    v_lshl_add_u32 v{VA1}, v15, 5, v14
    s_and_b32 s60, s{S_FJ}, 1
    s_lshl_b32 s60, s60, 1
    s_add_u32 s60, s60, s{S_FH}
    v_xor_b32 v15, s60, v12
    v_lshl_add_u32 v{VAH}, v15, 5, v14""")
    a(f"""v_and_b32 v10, 31, v0
    s_lshl_b32 s60, s{S_MW}, 5
    v_add_u32 v12, s60, v10
    v_bfe_u32 v13, v10, 1, 3
    v_xor_b32 v13, v13, v11
    v_lshlrev_b32 v13, 4, v13
    v_lshl_add_u32 v{VXR}, v12, 7, v13
    v_xor_b32 v{VXR+1}, 32, v{VXR}
    v_xor_b32 v{VXR+2}, 64, v{VXR}
    v_xor_b32 v{VXR+3}, 96, v{VXR}""")
    a(f"""s_lshl_b32 s60, s{S_MI}, 3
    s_lshl_b32 s61, s{S_MW}, 1
    s_add_u32 s60, s60, s61
    v_bfe_u32 v12, v0, 4, 1
    v_add_u32 v12, s60, v12
    s_mov_b32 s60, 147456
    v_mul_lo_u32 v12, v12, s60
    v_and_b32 v13, 15, v0
    v_lshl_add_u32 v12, v13, 4, v12
    v_lshl_add_u32 v{VOH}, v11, 8, v12""")
def silu_ops(acc,nch,soff_list,sc):
    ops=[]
    for cc in range(nch):
        b=acc+16*cc
        for i in range(8): ops.append(f"v_mul_f32 v{VT+i}, {f2u(-LOG2E):#x}, v{b+i}")
        for i in range(8): ops.append(f"v_exp_f32 v{VT+i}, v{VT+i}")
        for i in range(8): ops.append(f"v_mul_f32 v{b+8+i}, v{b+i}, v{b+8+i}")
        for i in range(8): ops.append(f"v_add_f32 v{VT+i}, 1.0, v{VT+i}")
        for i in range(8): ops.append(f"v_rcp_f32 v{VT+i}, v{VT+i}")
        ops.append("s_nop 0")
        for i in range(8): ops.append(f"v_mul_f32 v{b+8+i}, v{b+8+i}, v{VT+i}")
        for i in range(4): ops.append(f"v_cvt_pk_bf16_f32 v{VP+4*cc+i}, v{b+8+2*i}, v{b+9+2*i}")
        ops.append(("st",soff_list[cc],VP+4*cc))
    return ops
def phaseA(a,nslots=10,bar_step=3,sc="",pre_hook=None,pass_hook=None,tail=True):
    NST=45
    items=[]
    for t in range(NST):
        if t<9: items.append(("X",t))
        items.append(("W",t))
    slot_of={it:i%nslots for i,it in enumerate(items)}
    nxt=[0]
    def issue_item():
        if nxt[0]>=len(items): return
        it=items[nxt[0]]; nxt[0]+=1
        k,t=it; p,tt=divmod(t,9)
        a(f"s_add_u32 m0, s{S_M0}, {slot_of[it]*SLOT}")
        if k=="X":
            a(f"s_movk_i32 s{S_T}, {tt*128}")
            a.vmem(f"buffer_load_dwordx4 v{VOX0}, {sr(S_X,4)}, s{S_T} offen lds",("st",t))
            a.vmem(f"buffer_load_dwordx4 v{VOX1}, {sr(S_X,4)}, s{S_T} offen offset:1024 lds",("st",t))
        else:
            base=S_LINE if p<4 else S_LINEH
            a(f"s_add_u32 s{S_T}, s{base}, {tt*64*9216+(p*128 if p<4 else 0)}")
            a.vmem(f"buffer_load_dwordx4 v{VOW0}, {sr(S_W,4)}, s{S_T} offen lds",("st",t))
            a.vmem(f"buffer_load_dwordx4 v{VOW1}, {sr(S_W,4)}, s{S_T} offen offset:1024 lds",("st",t))
    for i in range(nslots): issue_item()
    phaseA_setup2(a)
    if pre_hook: pre_hook()
    cur={"W":0,"X":0}
    def win(kind,slot,regs):
        base=slot*SLOT; w=(base//49152)*49152
        if w!=cur[kind]:
            d=w-cur[kind]
            for r in regs: a(f"v_add_u32 v{r}, {d&0xffffffff:#x}, v{r}")
            cur[kind]=w
        return base-w
    def reads(n):
        t,s=divmod(n,4); p=t//9
        o=win("W",slot_of[("W",t)],[VA0,VA1,VAH])
        fb=FR+8*(n%2)
        for cc in range(2 if p<4 else 1):
            va=[VA0,VA1][cc] if p<4 else VAH
            for tt in range(2):
                a.lds(f"ds_read_b64_tr_b16 {vr(fb+4*cc+2*tt,2)}, v{va} offset:{o+(16*s+4*tt)*128}",("n",n))
        if p==0:
            o=win("X",slot_of[("X",t)],[VXR,VXR+1,VXR+2,VXR+3])
            a.lds(f"ds_read_b128 {vr(XF+4*n,4)}, v{VXR+s} offset:{o}",("n",n))
    a.wait_vm(("st",0)); a("s_barrier")
    reads(0)
    pend=[]
    def drain(k):
        for _ in range(k):
            if not pend: return
            op=pend.pop(0)
            if isinstance(op,tuple):
                _,so,vp=op
                a(so)
                a.vmem(f"buffer_store_dwordx4 {vr(vp,4)}, v{VOH}, {sr(S_H,4)}, s{S_T} offen {sc}","hst")
            else: a(op)
    for n in range(NST*4):
        t,s=divmod(n,4); p,tt=divmod(t,9); kn=n-36*p
        free=0
        if s==bar_step and t+1<NST:
            a.wait_vm(("st",t+1)); a("s_barrier")
            if t>=1: free=2 if t-1<9 else 1
        if n+1<NST*4: reads(n+1)
        a.wait_lg(("n",n))
        fb=FR+8*(n%2); acc=ACC[p%2]
        for cc in range(2 if p<4 else 1):
            d=vr(acc+16*cc,16)
            a(f"v_mfma_f32_32x32x16_bf16 {d}, {vr(fb+4*cc,4)}, {vr(XF+4*kn,4)}, {d if kn else 0}")
            if cc==0:
                for _ in range(free): issue_item()
            if kn>=3: drain(2 if p<4 else 4)
        if kn==35:
            assert not pend
            if p<4: so=[f"s_add_u32 s{S_T}, s{S_FC}, {p*2048+cc*512}" for cc in range(2)]
            else: so=[f"s_mov_b32 s{S_T}, s{S_FCH}"]
            pend=silu_ops(acc,2 if p<4 else 1,so,sc)
        if pass_hook: pass_hook(n)
    if tail:
        a("s_nop 15")
        drain(1000)
    return pend,drain

BASES=[0,1,2,3,4,5,6,7,256,258,260,262,512,516,768,772,1024,1280,1536,1792,2048]
SSM_LDS=16384
def ssm_wave(a,sD,sLB,sc_ld="",sc_st="",pre_u_hook=None):
    R=68
    YT=0; XT=32*272
    KR0=0; KR1=4160; UZ=8320; U0=8400; T2=8320+5200
    a(f"s_lshl_b32 s72, s{sD}, 8\nv_lshlrev_b32 v1, 2, v0")
    for i,p in enumerate([P_ARE,P_AIM,P_BRE,P_BIM,P_CRE,P_CIM]):
        srd(a,R,p,576*256)
        a.vmem(f"buffer_load_dword v{2+i}, v1, {sr(R,4)}, s72 offen","par")
    a(f"s_lshl_b32 s73, s{sD}, 1\nv_mov_b32 v10, 0")
    srd(a,R,P_LDT,1152); a.vmem(f"buffer_load_ushort v8, v10, {sr(R,4)}, s73 offen","par")
    srd(a,R,P_DSK,1152); a.vmem(f"buffer_load_ushort v9, v10, {sr(R,4)}, s73 offen","par")
    a(f"v_add_u32 v11, s{sLB}, v1")
    a(f"v_and_b32 v12, 31, v0\nv_lshrrev_b32 v13, 5, v0\nv_mul_u32_u24 v14, 272, v12\nv_lshl_add_u32 v14, v13, 4, v14\nv_add_u32 v14, s{sLB}, v14")
    a.wait_vm("par")
    hi=f2u(LOG2E); lo=f2u(LOG2E-struct.unpack("<f",struct.pack("<I",hi))[0])
    a(f"""v_lshlrev_b32 v8, 16, v8
    v_lshlrev_b32 v9, 16, v9
    s_mov_b32 s74, {hi:#x}
    v_mul_f32 v15, s74, v8
    v_fma_f32 v16, v8, s74, -v15
    v_fmac_f32 v16, {lo:#x}, v8
    v_exp_f32 v15, v15
    v_mul_f32 v16, {f2u(math.log(2)):#x}, v16
    v_fma_f32 v15, v15, v16, v15
    v_cvt_pk_bf16_f32 v15, v15, v15
    v_lshlrev_b32 v8, 16, v15""")
    KA=100
    def cmul(d,x,y):
        a(f"v_mul_f32 v40, v{x+1}, v{y+1}\nv_mul_f32 v41, v{x+1}, v{y}\nv_fma_f32 v40, v{x}, v{y}, -v40\nv_fma_f32 v{d+1}, v{x}, v{y+1}, v41\nv_mov_b32 v{d}, v40") if d==x else a(f"v_mul_f32 v40, v{x+1}, v{y+1}\nv_mul_f32 v41, v{x+1}, v{y}\nv_fma_f32 v{d}, v{x}, v{y}, -v40\nv_fma_f32 v{d+1}, v{x}, v{y+1}, v41")
    def E(d,p):
        a(f"v_mul_f32 v42, {f2u(float(p)):#x}, v20\nv_mul_f32 v43, {f2u(float(p)):#x}, v21\nv_exp_f32 v42, v42\nv_fract_f32 v43, v43\nv_cos_f32 v{d}, v43\nv_sin_f32 v{d+1}, v43\ns_nop 0\nv_mul_f32 v{d}, v42, v{d}\nv_mul_f32 v{d+1}, v42, v{d+1}")
    wi=[0]
    def put(off,x,neg):
        r=44+(wi[0]%4); wi[0]+=1
        a(f"v_cvt_pk_bf16_f32 v{r}, v{x}, {'-' if neg else ''}v{x+1}")
        a(f"ds_write_b32 v11, v{r} offset:{off}")
    for rnd in range(2):
        for i in range(6):
            a(f"v_lshlrev_b32 v{22+i}, 16, v{2+i}" if rnd==0 else f"v_and_b32 v{22+i}, 0xffff0000, v{2+i}")
        a(f"""v_mul_f32 v22, v8, v22
        v_mul_f32 v23, v8, v23
        v_mul_f32 v24, v8, v24
        v_mul_f32 v25, v8, v25
        v_mul_f32 v20, {f2u(LOG2E):#x}, v22
        v_mul_f32 v21, {f2u(1/(2*math.pi)):#x}, v23""")
        cmul(28,24,26)
        E(30,1); E(32,8); E(34,256)
        if rnd==1: a("s_waitcnt lgkmcnt(0)"); a.lg=[]
        a("v_mov_b32 v48, 0x3f80"); a(f"ds_write_b32 v11, v48 offset:{YT}")
        put(YT+272,32,False)
        cur=32
        xs=[]
        for aa in range(2,32):
            d=36 if cur!=36 else 38
            cmul(d,cur,32); put(YT+272*aa,d,False); cur=d
        row=lambda b: XT+272*BASES.index(b)
        put(row(0),28,True)
        cur=28
        for b in range(1,8):
            d=36 if cur!=36 else 38
            cmul(d,cur,30); put(row(b),d,True); cur=d
        cmul(50,30,30); cmul(52,50,50)
        cmul(28,28,34); put(row(256),28,True)
        cmul(36,28,50); put(row(258),36,True); cmul(38,36,50); put(row(260),38,True); cmul(36,38,50); put(row(262),36,True)
        cmul(28,28,34); put(row(512),28,True); cmul(36,28,52); put(row(516),36,True)
        cmul(28,28,34); put(row(768),28,True); cmul(36,28,52); put(row(772),36,True)
        for b in [1024,1280,1536,1792,2048]:
            cmul(28,28,34); put(row(b),28,True)
        a("s_waitcnt lgkmcnt(0)")
        for s in range(8):
            a(f"ds_read_b128 {vr(56+8*(s%4),4)}, v14 offset:{YT+32*s}\nds_read_b128 {vr(60+8*(s%4),4)}, v14 offset:{XT+32*s}")
            if s%4==3:
                for q in range(4):
                    a(f"s_waitcnt lgkmcnt({6-2*q})")
                    a(f"v_mfma_f32_32x32x16_bf16 {vr(KA,16)}, {vr(56+8*q,4)}, {vr(60+8*q,4)}, {vr(KA,16) if (rnd or s>3 or q) else 0}")
    if pre_u_hook: pre_u_hook()
    srd(a,R,P_WS,T_SZ,XT_OFF)
    a(f"s_lshl_b32 s72, s{sD}, 12\nv_lshlrev_b32 v1, 4, v0")
    for i in range(4): a.vmem(f"buffer_load_dwordx4 {vr(120+4*i,4)}, v1, {sr(R,4)}, s72 offen offset:{1024*i} {sc_ld}","u")
    a("""v_and_b32 v15, 3, v12
    v_lshlrev_b32 v16, 1, v15
    v_add_u32 v16, 256, v16
    v_and_b32 v17, 1, v12
    v_lshlrev_b32 v17, 2, v17
    v_bfe_u32 v18, v12, 1, 1
    v_lshl_add_u32 v17, v18, 8, v17
    v_add_u32 v17, 512, v17
    v_subrev_u32 v18, 12, v12
    v_lshlrev_b32 v18, 8, v18
    v_cmp_gt_u32 vcc, 16, v12
    s_nop 1
    v_cndmask_b32 v18, v18, v17, vcc
    v_cmp_gt_u32 vcc, 12, v12
    s_nop 1
    v_cndmask_b32 v18, v18, v16, vcc
    v_cmp_gt_u32 vcc, 8, v12
    s_nop 1
    v_cndmask_b32 v18, v18, v12, vcc
    v_lshlrev_b32 v18, 1, v18
    v_lshl_add_u32 v18, v13, 6, v18""")
    a(f"v_add_u32 v18, s{sLB}, v18\nv_cmp_gt_u32 vcc, 21, v12")
    for j in range(8): a(f"v_cvt_pk_bf16_f32 v{56+j}, v{KA+2*j}, v{KA+2*j+1}")
    a("s_and_saveexec_b64 s[76:77], vcc")
    for r in range(16):
        aa=8*(r//4)+r%4
        a(f"ds_write_b16{'_d16_hi' if r%2 else ''} v18, v{56+r//2} offset:{T2+16*aa}")
    a("s_mov_b64 exec, s[76:77]\ns_waitcnt lgkmcnt(0)")
    for i in range(4):
        a(f"v_lshlrev_b32 v15, 3, v0\nv_sub_u32 v15, {2047-512*i}, v15")
        for e in range(9):
            a(f"v_subrev_u32 v{20+e}, {e}, v15")
        if i==3: a("v_max_i32 v28, 0, v28")
        for e in range(9): a(f"v_cvt_f32_u32 v{20+e}, v{20+e}")
        for e in range(9): a(f"v_cvt_pk_bf16_f32 v{20+e}, v{20+e}, v{20+e}")
        for e in range(9): a(f"v_and_b32 v{20+e}, 0xffff0000, v{20+e}")
        for e in range(9): a(f"v_cvt_u32_f32 v{20+e}, v{20+e}")
        for e in range(9): a(f"v_lshl_add_u32 v{20+e}, v{20+e}, 1, s{sLB}")
        for e in range(9): a(f"ds_read_u16 v{30+e}, v{20+e} offset:{T2}")
        a(f"v_lshl_add_u32 v16, v0, 4, s{sLB}")
        a("s_waitcnt lgkmcnt(0)")
        if i==3: a("v_cmp_eq_u32 vcc, 63, v0\ns_nop 1\nv_cndmask_b32 v38, v38, 0, vcc")
        for e in range(4): a(f"v_lshl_or_b32 v{40+e}, v{31+2*e}, 16, v{30+2*e}")
        for e in range(4): a(f"v_lshl_or_b32 v{44+e}, v{32+2*e}, 16, v{31+2*e}")
        a(f"ds_write_b128 v16, v[40:43] offset:{KR0+1024*i}\nds_write_b128 v16, v[44:47] offset:{KR1+1024*i}")
    a("v_mov_b32 v40, 0\nv_mov_b32 v41, 0\nv_mov_b32 v42, 0\nv_mov_b32 v43, 0\nv_cmp_gt_u32 vcc, 4, v0\ns_and_saveexec_b64 s[76:77], vcc")
    a(f"ds_write_b128 v16, v[40:43] offset:{KR0+4096}\nds_write_b128 v16, v[40:43] offset:{KR1+4096}\nds_write_b128 v16, v[40:43] offset:{UZ}")
    a("s_mov_b64 exec, s[76:77]")
    a(f"v_lshrrev_b32 v15, 2, v0\nv_mul_u32_u24 v15, 80, v15\nv_and_b32 v17, 3, v0\nv_lshl_add_u32 v15, v17, 4, v15\nv_add_u32 v15, s{sLB}, v15")
    a.wait_vm("u")
    for i in range(4): a(f"ds_write_b128 v15, {vr(120+4*i,4)} offset:{U0+16*80*i}")
    a(f"""v_or_b32 v16, 1, v12
    v_sub_u32 v16, 2047, v16
    v_lshlrev_b32 v16, 1, v16
    v_and_b32 v17, 1, v12
    v_sub_u32 v17, 1, v17
    v_mul_u32_u24 v17, {KR1}, v17
    v_add3_u32 v16, v16, v17, s{sLB}
    v_lshl_add_u32 v16, v13, 4, v16
    v_subrev_u32 v17, 2048, v16
    v_mul_u32_u24 v18, 80, v12
    v_lshl_add_u32 v18, v13, 4, v18
    v_add_u32 v18, s{sLB}, v18
    v_add_u32 v19, {U0}, v18
    v_lshl_add_u32 v20, v13, 4, s{sLB}
    v_add_u32 v20, {UZ}, v20
    v_add_u32 v21, {U0+32*80}, v18
    v_mov_b32 v23, v19
    s_waitcnt lgkmcnt(0)""")
    A0,A1=24,40
    FB=56
    NS=3
    def rd(n):
        aa,b=divmod(n,2); f=FB+16*(n%NS)
        if b==0:
            if aa: a("v_subrev_u32 v16, 64, v16\nv_subrev_u32 v17, 64, v17\nv_subrev_u32 v19, 80, v19\nv_subrev_u32 v21, 80, v21")
            a("v_max_i32 v22, v19, v20")
        o=8*b
        a.lds(f"ds_read2_b32 {vr(f,2)}, v16 offset0:{o} offset1:{o+1}",n)
        a.lds(f"ds_read2_b32 {vr(f+2,2)}, v16 offset0:{o+2} offset1:{o+3}",n)
        a.lds(f"ds_read_b128 {vr(f+8,4)}, v22 offset:{32*b}",n)
        a.lds(f"ds_read_b128 {vr(f+12,4)}, v21 offset:{32*b}",n)
        a.lds(f"ds_read2_b32 {vr(f+4,2)}, v17 offset0:{o} offset1:{o+1}",n)
        a.lds(f"ds_read2_b32 {vr(f+6,2)}, v17 offset0:{o+2} offset1:{o+3}",n)
    a.lg=[]
    rd(0); rd(1)
    for n in range(64):
        a.wait_lg(n)
        f=FB+16*(n%NS)
        a(f"v_mfma_f32_32x32x16_bf16 {vr(A0,16)}, {vr(f,4)}, {vr(f+8,4)}, {vr(A0,16) if n else 0}")
        a(f"v_mfma_f32_32x32x16_bf16 {vr(A1,16)}, {vr(f,4)}, {vr(f+12,4)}, {vr(A1,16) if n else 0}")
        if n+2<64: rd(n+2)
        a(f"v_mfma_f32_32x32x16_bf16 {vr(A1,16)}, {vr(f+4,4)}, {vr(f+8,4)}, {vr(A1,16)}")
    a(f"v_lshlrev_b32 v16, 3, v13\nv_sub_u32 v23, v23, v16")
    for tile in range(2):
        for j in range(4): a(f"ds_read_b64 {vr(56+8*tile+2*j,2)}, v23 offset:{32*80*tile+16*j}")
    a("s_nop 7\ns_waitcnt lgkmcnt(0)")
    for tile in range(2):
        acc=[A0,A1][tile]
        for j in range(4):
            u=56+8*tile+2*j
            a(f"""v_lshlrev_b32 v72, 16, v{u}
            v_and_b32 v73, 0xffff0000, v{u}
            v_lshlrev_b32 v74, 16, v{u+1}
            v_and_b32 v75, 0xffff0000, v{u+1}""")
            for i in range(4): a(f"v_fmac_f32 v{acc+4*j+i}, v9, v{72+i}")
            a(f"v_cvt_pk_bf16_f32 v{u}, v{acc+4*j}, v{acc+4*j+1}\nv_cvt_pk_bf16_f32 v{u+1}, v{acc+4*j+2}, v{acc+4*j+3}")
            a(f"ds_write_b64 v23, {vr(u,2)} offset:{32*80*tile+16*j}")
    a("s_waitcnt lgkmcnt(0)")
    for i in range(4): a(f"ds_read_b128 {vr(80+4*i,4)}, v15 offset:{U0+16*80*i}")
    srd(a,R,P_WS,T_SZ,AT_OFF)
    for i in range(4):
        a(f"s_waitcnt lgkmcnt({3-i})")
        a.vmem(f"buffer_store_dwordx4 {vr(80+4*i,4)}, v1, {sr(R,4)}, s72 offen offset:{1024*i} {sc_st}","ast")
SSM_LDS=8320+5200+4608
SSM_LDS=18176

B_VH,B_VW,B_VR=2,7,11
B_ACC=16; B_HB=96; B_FR=200; B_AT=232; B_G=242; B_VO=247; B_VAD=248; B_VAR=251; B_VRED=252
SB_H,SB_W,SB_O,SB_A,SB_G=40,44,48,68,72
SB_MT,SB_NT,SB_KQ,SB_BH,SB_BW,SB_M0,SB_T,SB_T2=52,53,54,55,56,57,58,59
def b_chunks():
    c=[]
    for p in range(4):
        for i in range(4):
            for fh in range(2): c.append(9*i+(i&1)+2*p+fh)
    for i in range(4): c.append(9*i+(8 if i%2==0 else 0))
    assert sorted(c)==list(range(36))
    return c
def phaseB_map(a,sid,endlabel):
    a(f"""s_and_b32 s60, s{sid}, 7
    s_lshr_b32 s61, s{sid}, 3
    s_cmp_ge_u32 s61, 30
    s_cbranch_scc1 {endlabel}
    s_mul_i32 s60, s60, 30
    s_add_u32 s60, s60, s61
    s_cmp_ge_u32 s60, 234
    s_cbranch_scc1 {endlabel}
    s_mul_hi_u32 s{SB_MT}, s60, {(2**32+8)//9:#x}
    s_mul_i32 s61, s{SB_MT}, 9
    s_sub_u32 s{SB_NT}, s60, s61""")
def phaseB_setup(a,NS,ldsbase=0):
    a(f"s_and_b32 s{SB_KQ}, s{SW}, 3")
    srd(a,SB_H,P_WS,H_SZ,H_OFF); srd(a,SB_W,P_WD,4608*1152); srd(a,SB_O,P_OUT,2048*1152)
    srd(a,SB_A,P_WS,T_SZ,AT_OFF); srd(a,SB_G,P_WS,8192,G_OFF)
    a(f"""s_mul_i32 s{SB_BH}, s{SB_KQ}, {36*1024}
    s_mul_i32 s{SB_BW}, s{SB_KQ}, {36*36864}
    s_mul_i32 s{SB_M0}, s{SB_KQ}, {NS*4096}
    s_add_u32 s{SB_M0}, s{SB_M0}, {ldsbase}
    s_mul_i32 s60, s{SB_MT}, {5*147456}
    v_lshl_add_u32 v{B_VH}, v0, 4, s60""")
    for j in range(1,5): a(f"v_add_u32 v{B_VH+j}, {147456*j}, v{B_VH}")
    a(f"""v_lshrrev_b32 v15, 3, v0
    v_bfe_u32 v1, v0, 1, 2
    v_bfe_u32 v{B_VW+1}, v0, 4, 2
    v_xor_b32 v1, v1, v{B_VW+1}
    v_and_b32 v{B_VW+1}, 1, v0
    v_lshlrev_b32 v{B_VW+1}, 4, v{B_VW+1}
    v_lshl_add_u32 v1, v1, 5, v{B_VW+1}
    v_mul_u32_u24 v15, 1152, v15
    s_lshl_b32 s60, s{SB_NT}, 7
    v_add3_u32 v{B_VW}, v1, v15, s60""")
    for i in range(1,4): a(f"v_add_u32 v{B_VW+i}, {8192*i}, v{B_VW}")
def phaseB_setup2(a,NS,aslot):
    a(f"""v_bfe_u32 v1, v0, 2, 3
    v_lshrrev_b32 v15, 5, v0
    v_lshl_add_u32 v15, v15, 4, v1
    v_lshrrev_b32 v1, 1, v1
    v_lshlrev_b32 v1, 5, v1
    v_lshl_add_u32 v1, v15, 7, v1
    v_and_b32 v15, 3, v0
    v_lshl_add_u32 v1, v15, 3, v1
    v_add_u32 v{B_VR}, s{SB_M0}, v1""")
    for d in range(1,4): a(f"v_xor_b32 v{B_VR+d}, {32*d}, v{B_VR}")
    a(f"""s_lshl_b32 s60, s{SB_NT}, 6
    s_lshl_b32 s61, s{SB_KQ}, 4
    s_add_u32 s60, s60, s61
    s_lshl_b32 s61, s60, 12
    s_mul_i32 s62, s{SB_MT}, 160
    s_add_u32 s61, s61, s62""")
    for i in range(3):
        a(f"""v_add_u32 v1, {64*i}, v0
        v_mul_u32_u24 v15, 6554, v1
        v_lshrrev_b32 v15, 16, v15
        v_mul_u32_u24 v{B_VAD+i}, {4096-160}, v15
        v_lshl_add_u32 v{B_VAD+i}, v1, 4, v{B_VAD+i}
        v_add_u32 v{B_VAD+i}, s61, v{B_VAD+i}""")
        if i: a(f"v_subrev_u32 v{B_VAD+i}, {1024*i}, v{B_VAD+i}")
    a(f"v_cmp_gt_u32 vcc, 32, v0\nv_mov_b32 v1, {BIG:#x}\ns_nop 0\nv_cndmask_b32 v{B_VAD+2}, v1, v{B_VAD+2}, vcc")
    a(f"""v_lshrrev_b32 v1, 2, v0
    v_mul_u32_u24 v1, 160, v1
    v_and_b32 v15, 3, v0
    v_lshl_add_u32 v1, v15, 3, v1
    v_add_u32 v{B_VAR}, s{SB_M0}, v1""")
    a(f"""s_mul_i32 s62, s{SB_MT}, 80
    v_and_b32 v1, 15, v0
    v_add_u32 v1, s62, v1
    v_lshlrev_b32 v{B_G}, 2, v1
    v_mul_u32_u24 v1, 1152, v1
    v_lshrrev_b32 v15, 4, v0
    v_lshl_add_u32 v1, v15, 3, v1
    s_lshl_b32 s60, s60, 1
    v_add_u32 v{B_VO}, s60, v1
    v_lshl_add_u32 v{B_VRED}, v0, 4, s{SB_M0}""")
def phaseB(a,PD=4,ldsbase=0,sc_h="",sc_a="",sc_o="",step_hook=None,pre_at_hook=None,at_step=None,bar="s_barrier"):
    NS=PD+1; C=b_chunks(); N=36
    if at_step is None: at_step=N-NS
    aslot=(N-NS)%NS
    def issue_w(n,i):
        if n>=N: return
        if i==0: a(f"s_add_u32 m0, s{SB_M0}, {(n%NS)*4096}\ns_add_u32 s{SB_T2}, s{SB_BW}, {C[n]*36864}")
        a.vmem(f"buffer_load_dwordx4 v{B_VW+i}, {sr(SB_W,4)}, s{SB_T2} offen offset:{1024*i} lds",("W",n))
    def issue_h(n,j):
        if n>=N: return
        if j==0: a(f"s_add_u32 s{SB_T}, s{SB_BH}, {C[n]*1024}")
        a.vmem(f"buffer_load_dwordx4 {vr(B_HB+20*(n%PD)+4*j,4)}, v{B_VH+j}, {sr(SB_H,4)}, s{SB_T} offen {sc_h}",("h",n))
    def reads(n):
        for d in range(4):
            for t in range(2):
                a.lds(f"ds_read_b64_tr_b16 {vr(B_FR+16*(n%2)+4*d+2*t,2)}, v{B_VR+d} offset:{(n%NS)*4096+1024*t}",("f",n))
    def issue_at():
        if pre_at_hook: pre_at_hook()
        a(f"s_add_u32 m0, s{SB_M0}, {aslot*4096}\ns_nop 0")
        for i in range(3): a.vmem(f"buffer_load_dwordx4 v{B_VAD+i}, {sr(SB_A,4)}, 0 offen offset:{1024*i} lds {sc_a}","at")
        for j in range(4,-1,-1): a.vmem(f"buffer_load_dword v{B_G+j}, v{B_G}, {sr(SB_G,4)}, 0 offen offset:{64*j} {sc_a}","at")
    for i in range(4): issue_w(0,i)
    for n in range(PD):
        if step_hook: step_hook(n-PD)
        for i in range(4): issue_w(n+1,i)
        for j in range(5): issue_h(n,j)
    phaseB_setup2(a,NS,aslot)
    a.wait_vm(("W",0)); reads(0)
    for n in range(N):
        if step_hook: step_hook(n)
        a.wait_vm(("h",n)); a.wait_vm(("W",n+1))
        a.wait_lg(("f",n))
        if n+1<N: reads(n+1)
        for j in range(5):
            for d in range(4):
                acc=vr(B_ACC+16*j+4*d,4)
                a(f"v_mfma_f32_16x16x32_bf16 {acc}, {vr(B_FR+16*(n%2)+4*d,4)}, {vr(B_HB+20*(n%PD)+4*j,4)}, {acc if n else 0}")
                if j<4 and d==0: issue_w(n+NS,j)
            issue_h(n+PD,j)
        if n==at_step: issue_at()
    if at_step>=N: issue_at()
    a("s_nop 7"); a.wait_vm("at")
    for j in range(5): a.lds(f"ds_read_b64_tr_b16 {vr(B_AT+2*j,2)}, v{B_VAR} offset:{aslot*4096+32*j}","a")
    a.wait_lg("a")
    lab=f"pb{id(a)%100000}"
    for k in range(4):
        a(f"s_cmp_lg_u32 s{SB_KQ}, {k}\ns_cbranch_scc1 {lab}_w{k}")
        for d in range(4):
            if d==k: continue
            for j in range(5): a(f"ds_write_b128 v{B_VRED}, {vr(B_ACC+16*j+4*d,4)} offset:{(d*5+j)*1024}")
        for j in range(5):
            for i in range(4):
                if k: a(f"v_mov_b32 v{B_ACC+16*j+i}, v{B_ACC+16*j+4*k+i}")
        a(f"{lab}_w{k}:")
    a(f"""s_mul_i32 s60, s{SB_KQ}, 5120
    s_add_u32 s60, s60, {ldsbase}
    v_lshl_add_u32 v1, v0, 4, s60
    s_waitcnt lgkmcnt(0)
    {bar}""")
    for o in range(1,4):
        a(f"s_add_u32 s60, s{SB_KQ}, {o}\ns_and_b32 s60, s60, 3\ns_mul_i32 s60, s60, {NS*4096}\nv_add_u32 v15, s60, v1")
        for j in range(5): a.lds(f"ds_read_b128 {vr(B_HB+20*(o-1)+4*j,4)}, v15 offset:{j*1024}",("r",o))
    for o in range(1,4):
        a.wait_lg(("r",o))
        for j in range(5):
            for i in range(0,4,2): a(f"v_pk_add_f32 {vr(B_ACC+16*j+i,2)}, {vr(B_ACC+16*j+i,2)}, {vr(B_HB+20*(o-1)+4*j+i,2)}")
    for j in range(5):
        b=B_ACC+16*j; t=B_ACC+16*j+4; u=B_AT+2*j
        a(f"""v_lshlrev_b32 v{t}, 16, v{u}
        v_and_b32 v{t+1}, 0xffff0000, v{u}
        v_lshlrev_b32 v{t+2}, 16, v{u+1}
        v_and_b32 v{t+3}, 0xffff0000, v{u+1}""")
        for i in range(4): a(f"v_sub_f32 v{t+i}, v{t+i}, v{b+i}")
        for i in range(4): a(f"v_fmac_f32 v{b+i}, v{B_G+j}, v{t+i}")
        a(f"v_cvt_pk_bf16_f32 v{b}, v{b}, v{b+1}\nv_cvt_pk_bf16_f32 v{b+1}, v{b+2}, v{b+3}")
        a(f"s_mov_b32 s60, {16*1152*j}")
        a.vmem(f"buffer_store_dwordx2 {vr(b,2)}, v{B_VO}, {sr(SB_O,4)}, s60 offen {sc_o}","o")
```

```python
import sys
from parts import *
NAME="gated_mix__ssm_conv_s4__swiglu_ffn__prompt"
hdr=[l for l in open("cdna_kernels/"+NAME+".s.ref").read().split("\n") if l.startswith(";") and "@launch" not in l and "Override" not in l and "grid=ceil" not in l]
def gen(out,sc_h="",PD=4,which="pgsb",stamps=False):
    L=[]; body=""; desc=""
    def K(name,grid,block,lds,fn,vg=256):
        nonlocal body,desc
        a=A(); fn(a); a(f"{name}_end:\ns_endpgm")
        L.append(f"; @launch kernel={name} grid=({grid},1,1) block=({block},1,1) lds={lds}")
        body+=kernel_head(name)+a.text(); desc+=kernel_desc(name,vg)
    def prep(a):
        prologue(a,256,"prep_kernel_end")
        srd(a,40,P_X,2048*1152); srd(a,44,P_GW,1152); srd(a,48,P_WS,8192,G_OFF); srd(a,52,P_WS,T_SZ,XT_OFF)
        prep_g_issue(a,40,44,2)
        a("s_cmp_ge_u32 s2, 144\ns_cbranch_scc1 prep_noxt")
        sv=list(a.vm)
        prep_xt_issue(a,40,24,0)
        a.wait_vm("xt"); a("s_barrier")
        prep_xt_finish(a,52,24,0)
        a("prep_noxt:"); a.vm=sv
        a("s_waitcnt vmcnt(0)"); a.vm=[]
        prep_g_finish(a,48,2)
    def g1(a):
        prologue(a,256,"gemm1_kernel_end")
        if stamps: stamp(a,0)
        phaseA_setup(a); phaseA(a,sc=sc_h)
        if stamps: stamp(a,1)
    def ssm(a):
        prologue(a,144,"ssm_kernel_end")
        if stamps: stamp(a,2)
        a(f"s_lshl_b32 s80, s2, 2\ns_add_u32 s80, s80, s{SW}\ns_mul_i32 s81, s{SW}, {SSM_LDS}")
        ssm_wave(a,80,81)
        if stamps: stamp(a,3)
    def g2(a):
        prologue(a,240,"gemm2_kernel_end")
        phaseB_map(a,2,"gemm2_kernel_end")
        if stamps: stamp(a,4)
        phaseB_setup(a,PD+1); phaseB(a,PD=PD)
        if stamps: stamp(a,5)
    if "p" in which: K("prep_kernel",256,512,16384,prep,64)
    if "g" in which: K("gemm1_kernel",256,512,163840,g1)
    if "s" in which: K("ssm_kernel",144,256,4*SSM_LDS,ssm)
    if "b" in which: K("gemm2_kernel",240,256,4*(PD+1)*4096,g2)
    txt="\n".join(hdr+L)+'\n.amdgcn_target "amdgcn-amd-amdhsa--gfx950"\n.text\n'+body+'.section .rodata,"a"\n'+desc
    open(out,"w").write(txt)
if __name__=="__main__":
    gen("cdna_kernels/"+NAME+".s")
    gen("v1s.s",stamps=True)
```

```python
from asmlib import *
import math
H_OFF=0; H_SZ=2048*4608*2
XT_OFF=0x1200000; AT_OFF=0x1440000; T_SZ=0x240000
G_OFF=0x1680000; TS_OFF=0x1700000
LOG2E=1.4426950408889634
BIG=0x40000000
P_X,P_ARE,P_AIM,P_BRE,P_BIM,P_CRE,P_CIM,P_LDT=4,6,8,10,12,14,16,18
P_DSK,P_BX,P_WG,P_WU,P_WD,P_GW,P_OUT,P_DBG,P_WS=20,22,24,26,28,30,32,34,36
SW=38
def prologue(a,nwg,endlabel):
    a(f"s_cmp_ge_u32 s2, {nwg}\ns_cbranch_scc1 {endlabel}")
    a("s_load_dwordx16 s[4:19], s[0:1], 0\ns_load_dwordx16 s[20:35], s[0:1], 64\ns_load_dwordx2 s[36:37], s[0:1], 128")
    a(f"v_lshrrev_b32 v1, 6, v0\nv_and_b32 v0, 63, v0\ns_nop 0\nv_readfirstlane_b32 s{SW}, v1")
    a("s_waitcnt lgkmcnt(0)")
def stamp(a,slot,sbase=90,vt=(1,2),clk=False):
    a(f"{'s_memtime' if clk else 's_memrealtime'} s[{sbase}:{sbase+1}]\ns_lshl_b32 s{sbase+2}, s2, 7\ns_lshl_b32 s{sbase+3}, s{SW}, 15\ns_add_u32 s{sbase+2}, s{sbase+2}, s{sbase+3}")
    a(f"s_add_u32 s{sbase+2}, s{sbase+2}, {TS_OFF+slot*4:#x}\ns_waitcnt lgkmcnt(0)"); a.lg=[]
    a(f"v_mov_b32 v{vt[0]}, s{sbase+2}\nv_mov_b32 v{vt[1]}, s{sbase}")
    a.vmem(f"global_store_dword v{vt[0]}, v{vt[1]}, s[{P_WS}:{P_WS+1}]","stamp")

def prep_g_issue(a,sX,sGW,v):
    a(f"s_lshl_b32 s60, s2, 3\ns_add_u32 s60, s60, s{SW}\ns_mul_i32 s61, s60, 1152")
    a(f"v_lshlrev_b32 v{v}, 4, v0\nv_add_u32 v{v+1}, 1024, v{v}\nv_cmp_gt_u32 vcc, 8, v0\nv_mov_b32 v{v+2}, {BIG:#x}\ns_nop 0\nv_cndmask_b32 v{v+1}, v{v+2}, v{v+1}, vcc")
    a.vmem(f"buffer_load_dwordx4 {vr(v+2,4)}, v{v}, {sr(sX,4)}, s61 offen","g")
    a.vmem(f"buffer_load_dwordx4 {vr(v+6,4)}, v{v+1}, {sr(sX,4)}, s61 offen","g")
    a.vmem(f"buffer_load_dwordx4 {vr(v+10,4)}, v{v}, {sr(sGW,4)}, 0 offen","g")
    a.vmem(f"buffer_load_dwordx4 {vr(v+14,4)}, v{v+1}, {sr(sGW,4)}, 0 offen","g")
def prep_g_finish(a,sG,v,sc=""):
    a.wait_vm("g")
    a(f"v_mov_b32 v{v}, 0")
    for i in range(8): a(f"v_dot2c_f32_bf16 v{v}, v{v+2+i}, v{v+10+i}")
    a("s_nop 2")
    for m in ["row_shr:1 row_mask:0xf","row_shr:2 row_mask:0xf","row_shr:4 row_mask:0xf","row_shr:8 row_mask:0xf","row_bcast:15 row_mask:0xa","row_bcast:31 row_mask:0xc"]:
        a(f"v_add_f32_dpp v{v}, v{v}, v{v} {m} bank_mask:0xf\ns_nop 1")
    a(f"v_mul_f32 v{v}, {f2u(-LOG2E):#x}, v{v}\nv_exp_f32 v{v}, v{v}\ns_nop 0\nv_add_f32 v{v}, 1.0, v{v}\nv_rcp_f32 v{v}, v{v}")
    a(f"s_lshl_b32 s61, s60, 2\nv_mov_b32 v{v+1}, {BIG:#x}\nv_cmp_eq_u32 vcc, 63, v0\ns_nop 1\nv_cndmask_b32 v{v+1}, v{v+1}, 0, vcc")
    a.vmem(f"buffer_store_dword v{v}, v{v+1}, {sr(sG,4)}, s61 offen {sc}","gst")
def prep_xt_issue(a,sX,v,ldsbase):
    a(f"s_mul_hi_u32 s62, s2, {(2**32+8)//9:#x}\ns_mul_i32 s63, s62, 9\ns_sub_u32 s63, s2, s63")
    a(f"s_mul_i32 s64, s62, {128*1152}\ns_lshl_b32 s65, s63, 7\ns_add_u32 s64, s64, s65\ns_mul_i32 s65, s{SW}, {16*1152}\ns_add_u32 s64, s64, s65")
    a(f"v_lshrrev_b32 v{v}, 3, v0\nv_and_b32 v{v+1}, 7, v0\nv_bfe_u32 v{v+2}, v0, 4, 1\nv_xor_b32 v{v+1}, v{v+1}, v{v+2}")
    a(f"s_lshl_b32 s65, s{SW}, 2\ns_and_b32 s65, s65, 4")
    a(f"v_xor_b32 v{v+1}, s65, v{v+1}\nv_xor_b32 v{v+2}, 2, v{v+1}")
    a(f"v_mul_u32_u24 v{v}, 1152, v{v}\nv_lshl_add_u32 v{v+1}, v{v+1}, 4, v{v}\nv_lshl_add_u32 v{v+2}, v{v+2}, 4, v{v}\nv_add_u32 v{v+2}, {8*1152-1024}, v{v+2}")
    a(f"s_lshl_b32 s65, s{SW}, 11\ns_add_u32 m0, s65, {ldsbase}\ns_nop 0")
    a.vmem(f"buffer_load_dwordx4 v{v+1}, {sr(sX,4)}, s64 offen lds","xt")
    a.vmem(f"buffer_load_dwordx4 v{v+2}, {sr(sX,4)}, s64 offen offset:1024 lds","xt")
def prep_xt_finish(a,sXT,v,ldsbase,sc=""):
    a(f"v_bfe_u32 v{v}, v0, 2, 2\nv_and_b32 v{v+1}, 3, v0\nv_lshrrev_b32 v{v+2}, 4, v0")
    a(f"v_lshl_add_u32 v{v+3}, v{v+2}, 2, v{v+1}")
    a(f"v_lshl_add_u32 v{v+3}, v{v+3}, 3, v{v}")
    a(f"v_lshrrev_b32 v{v+4}, 1, v{v}\nv_lshl_or_b32 v{v+4}, v{v+1}, 1, v{v+4}\nv_xor_b32 v{v+4}, s{SW}, v{v+4}")
    a(f"v_lshlrev_b32 v{v+4}, 4, v{v+4}\nv_lshl_add_u32 v{v+3}, v{v+3}, 7, v{v+4}")
    for u in range(2):
        a.lds(f"ds_read_b64_tr_b16 {vr(v+4+4*u,2)}, v{v+3} offset:{ldsbase+8*u}","xt")
        a.lds(f"ds_read_b64_tr_b16 {vr(v+6+4*u,2)}, v{v+3} offset:{ldsbase+8*u+512}","xt")
    a(f"v_lshl_add_u32 v{v+2}, v{v+2}, 2, v{v}\nv_lshlrev_b32 v{v+2}, 4, v{v+2}\nv_lshl_add_u32 v{v+2}, v{v+1}, 12, v{v+2}")
    a(f"s_lshl_b32 s64, s63, 18\ns_lshl_b32 s65, s{SW}, 15\ns_add_u32 s64, s64, s65\ns_lshl_b32 s65, s62, 8\ns_add_u32 s64, s64, s65\ns_add_u32 s65, s64, 0x4000")
    a.wait_lg("xt")
    a.vmem(f"buffer_store_dwordx4 {vr(v+4,4)}, v{v+2}, {sr(sXT,4)}, s64 offen {sc}","xtst")
    a.vmem(f"buffer_store_dwordx4 {vr(v+8,4)}, v{v+2}, {sr(sXT,4)}, s65 offen {sc}","xtst")

XF=112; ACC=[48,80]; FR=32
VA0,VA1,VOW0,VOW1,VOX0,VOX1,VOH,VAH=2,3,4,5,6,7,8,9
VXR=80
VT=12
VP=20
S_X,S_W,S_H=40,44,48
S_MI,S_FJ,S_MW,S_FH,S_LINE,S_LINEH,S_M0,S_T,S_FC,S_FCH=52,53,54,55,56,57,58,59,66,67
SLOT=16384
OPT={}
def phaseA_setup(a):
    a(f"""s_and_b32 s60, s2, 7
    s_lshr_b32 s61, s2, 3
    s_and_b32 s62, s60, 1
    s_lshl_b32 s62, s62, 3
    s_and_b32 s63, s61, 7
    s_add_u32 s{S_MI}, s62, s63
    s_lshr_b32 s62, s60, 1
    s_lshl_b32 s62, s62, 2
    s_lshr_b32 s63, s61, 3
    s_add_u32 s{S_FJ}, s62, s63
    s_and_b32 s{S_MW}, s{SW}, 3
    s_lshr_b32 s{S_FH}, s{SW}, 2""")
    srd(a,S_X,P_X,2048*1152)
    a(f"s_cmp_eq_u32 s{S_FH}, 0\ns_cselect_b32 s{S_W}, s{P_WG}, s{P_WU}\ns_cselect_b32 s{S_W+1}, s{P_WG+1}, s{P_WU+1}\ns_mov_b32 s{S_W+2}, {576*9216:#x}\ns_mov_b32 s{S_W+3}, 0x20000")
    srd(a,S_H,P_WS,H_SZ,H_OFF)
    a(f"""s_and_b32 s60, s{S_FJ}, 1
    s_mul_i32 s61, s{S_FJ}, 9
    s_add_u32 s62, s61, s60
    s_lshl_b32 s{S_LINE}, s62, 6
    s_add_u32 s63, s{S_LINE}, 512
    s_sub_u32 s64, s{S_LINE}, 128
    s_cmp_eq_u32 s60, 0
    s_cselect_b32 s{S_LINEH}, s63, s64
    s_add_u32 s62, s62, s{S_FH}
    s_lshl_b32 s{S_FC}, s62, 10
    s_lshl_b32 s64, s{S_FH}, 9""")
    a(f"""s_add_u32 s63, s61, 8
    s_cmp_eq_u32 s60, 0
    s_cselect_b32 s63, s63, s61
    s_lshl_b32 s63, s63, 10
    s_add_u32 s{S_FCH}, s63, s64
    s_lshl_b32 s{S_M0}, s{SW}, 11""")
    a(f"""v_lshrrev_b32 v10, 3, v0
    v_bfe_u32 v11, v0, 1, 2
    v_bfe_u32 v12, v0, 4, 1
    v_xor_b32 v11, v11, v12
    s_lshl_b32 s60, s{S_FH}, 1
    v_xor_b32 v11, s60, v11
    v_and_b32 v12, 1, v0
    v_lshlrev_b32 v12, 4, v12
    v_lshl_add_u32 v11, v11, 5, v12
    s_lshl_b32 s60, s{S_MW}, 4
    v_add_u32 v12, s60, v10
    v_mul_u32_u24 v12, 9216, v12
    v_add_u32 v{VOW0}, v11, v12
    v_add_u32 v{VOW1}, {8*9216-1024}, v{VOW0}""")
    a(f"""s_lshl_b32 s60, s{S_MI}, 7
    s_lshl_b32 s61, s{SW}, 4
    s_add_u32 s60, s60, s61
    v_add_u32 v12, s60, v10
    v_mul_u32_u24 v12, 1152, v12
    v_and_b32 v11, 7, v0
    v_lshrrev_b32 v13, 4, v0
    v_xor_b32 v11, v11, v13
    v_lshl_add_u32 v{VOX0}, v11, 4, v12
    v_xor_b32 v11, 4, v11
    v_lshl_add_u32 v{VOX1}, v11, 4, v12
    v_add_u32 v{VOX1}, {8*1152-1024}, v{VOX1}""")
def phaseA_setup2(a):
    a(f"""v_bfe_u32 v10, v0, 4, 1
    v_lshrrev_b32 v11, 5, v0
    v_bfe_u32 v12, v0, 2, 2
    v_and_b32 v13, 3, v0
    v_lshl_add_u32 v14, v11, 3, v12
    v_lshlrev_b32 v14, 7, v14
    v_lshl_add_u32 v14, v10, 13, v14
    v_lshl_add_u32 v14, v13, 3, v14
    v_lshrrev_b32 v12, 1, v12
    v_lshl_or_b32 v12, v10, 1, v12
    s_lshl_b32 s60, s{S_FH}, 1
    v_xor_b32 v15, s60, v12
    v_lshl_add_u32 v{VA0}, v15, 5, v14
    v_xor_b32 v15, 1, v15
    v_lshl_add_u32 v{VA1}, v15, 5, v14
    s_and_b32 s60, s{S_FJ}, 1
    s_lshl_b32 s60, s60, 1
    s_add_u32 s60, s60, s{S_FH}
    v_xor_b32 v15, s60, v12
    v_lshl_add_u32 v{VAH}, v15, 5, v14""")
    a(f"""v_and_b32 v10, 31, v0
    s_lshl_b32 s60, s{S_MW}, 5
    v_add_u32 v12, s60, v10
    v_bfe_u32 v13, v10, 1, 3
    v_xor_b32 v13, v13, v11
    v_lshlrev_b32 v13, 4, v13
    v_lshl_add_u32 v{VXR}, v12, 7, v13
    v_xor_b32 v{VXR+1}, 32, v{VXR}
    v_xor_b32 v{VXR+2}, 64, v{VXR}
    v_xor_b32 v{VXR+3}, 96, v{VXR}""")
    a(f"""s_lshl_b32 s60, s{S_MI}, 3
    s_lshl_b32 s61, s{S_MW}, 1
    s_add_u32 s60, s60, s61
    v_bfe_u32 v12, v0, 4, 1
    v_add_u32 v12, s60, v12
    s_mov_b32 s60, 147456
    v_mul_lo_u32 v12, v12, s60
    v_and_b32 v13, 15, v0
    v_lshl_add_u32 v12, v13, 4, v12
    v_lshl_add_u32 v{VOH}, v11, 8, v12""")
def silu_ops(acc,nch,soff_list,sc):
    ops=[]
    for cc in range(nch):
        b=acc+16*cc
        for i in range(8): ops.append(f"v_mul_f32 v{VT+i}, {f2u(-LOG2E):#x}, v{b+i}")
        for i in range(8): ops.append(f"v_exp_f32 v{VT+i}, v{VT+i}")
        for i in range(8): ops.append(f"v_mul_f32 v{b+8+i}, v{b+i}, v{b+8+i}")
        for i in range(8): ops.append(f"v_add_f32 v{VT+i}, 1.0, v{VT+i}")
        for i in range(8): ops.append(f"v_rcp_f32 v{VT+i}, v{VT+i}")
        ops.append("s_nop 0")
        for i in range(8): ops.append(f"v_mul_f32 v{b+8+i}, v{b+8+i}, v{VT+i}")
        for i in range(4): ops.append(f"v_cvt_pk_bf16_f32 v{VP+4*cc+i}, v{b+8+2*i}, v{b+9+2*i}")
        ops.append(("st",soff_list[cc],VP+4*cc))
    return ops
def phaseA(a,nslots=10,bar_step=3,sc="",pre_hook=None,pass_hook=None,tail=True):
    NST=45
    items=[]
    for t in range(NST):
        if t<9: items.append(("X",t))
        items.append(("W",t))
    slot_of={it:i%nslots for i,it in enumerate(items)}
    nxt=[0]
    def issue_item():
        if nxt[0]>=len(items): return
        it=items[nxt[0]]; nxt[0]+=1
        if OPT.get("nodma") and nxt[0]>20: return
        k,t=it; p,tt=divmod(t,9)
        a(f"s_add_u32 m0, s{S_M0}, {slot_of[it]*SLOT}")
        if k=="X":
            a(f"s_movk_i32 s{S_T}, {tt*128}")
            a.vmem(f"buffer_load_dwordx4 v{VOX0}, {sr(S_X,4)}, s{S_T} offen lds",("st",t))
            a.vmem(f"buffer_load_dwordx4 v{VOX1}, {sr(S_X,4)}, s{S_T} offen offset:1024 lds",("st",t))
        else:
            base=S_LINE if p<4 else S_LINEH
            a(f"s_add_u32 s{S_T}, s{base}, {tt*64*9216+(p*128 if p<4 else 0)}")
            a.vmem(f"buffer_load_dwordx4 v{VOW0}, {sr(S_W,4)}, s{S_T} offen lds",("st",t))
            a.vmem(f"buffer_load_dwordx4 v{VOW1}, {sr(S_W,4)}, s{S_T} offen offset:1024 lds",("st",t))
    for i in range(nslots): issue_item()
    phaseA_setup2(a)
    if pre_hook: pre_hook()
    cur={"W":0,"X":0}
    def win(kind,slot,regs):
        base=slot*SLOT; w=(base//49152)*49152
        if w!=cur[kind]:
            d=w-cur[kind]
            for r in regs: a(f"v_add_u32 v{r}, {d&0xffffffff:#x}, v{r}")
            cur[kind]=w
        return base-w
    def reads(n,sel=(0,1)):
        t,s=divmod(n,4); p=t//9
        o=win("W",slot_of[("W",t)],[VA0,VA1,VAH])
        fb=FR+8*(n%2)
        for cc in range(2 if p<4 else 1):
            if cc not in sel: continue
            va=[VA0,VA1][cc] if p<4 else VAH
            for tt in range(2):
                a.lds(f"ds_read_b64_tr_b16 {vr(fb+4*cc+2*tt,2)}, v{va} offset:{o+(16*s+4*tt)*128}",("n",n))
        if p==0 and 0 in sel:
            o=win("X",slot_of[("X",t)],[VXR,VXR+1,VXR+2,VXR+3])
            a.lds(f"ds_read_b128 {vr(XF+4*n,4)}, v{VXR+s} offset:{o}",("n",n))
    a.wait_vm(("st",0)); a("s_barrier")
    reads(0)
    pend=[]; freeq=[0]; freed=[0]
    def drain(k):
        for _ in range(k):
            if not pend: return
            op=pend.pop(0)
            if isinstance(op,tuple):
                _,so,vp=op
                a(so)
                a.vmem(f"buffer_store_dwordx4 {vr(vp,4)}, v{VOH}, {sr(S_H,4)}, s{S_T} offen {sc}","hst")
            elif not OPT.get("nosilu"): a(op)
    for n in range(NST*4):
        t,s=divmod(n,4); p,tt=divmod(t,9); kn=n-36*p
        free=0
        BG=OPT.get("bg",1)
        if s==bar_step and t+1<NST and (t<9 or (t+1)%BG==0):
            if OPT.get("lgfirst"): a.wait_lg(("n",n))
            a.wait_vm(("st",min(NST-1,t+(1 if t<8 else BG))))
            if not OPT.get("nobar"): a("s_barrier")
            upto=t if OPT.get("lgfirst") else t-1
            freeq[0]+=sum(2 if q<9 else 1 for q in range(freed[0],upto+1)); freed[0]=upto+1
        free=min(freeq[0],2 if t<10 else 1); freeq[0]-=free
        ilv=OPT.get("ilv")
        if n+1<NST*4 and not ilv: reads(n+1)
        a.wait_lg(("n",n))
        fb=FR+8*(n%2); acc=ACC[p%2]
        for cc in range(2 if p<4 else 1):
            d=vr(acc+16*cc,16)
            if OPT.get("m16"):
                for q in range(2):
                    d4=vr(acc+16*cc+8*(kn%2)+4*q,4)
                    a(f"v_mfma_f32_16x16x32_bf16 {d4}, {vr(fb+4*cc,4)}, {vr(XF+4*(kn^q),4)}, {d4 if kn>1 else 0}")
            else: a(f"v_mfma_f32_32x32x16_bf16 {d}, {vr(fb+4*cc,4)}, {vr(XF+4*kn,4)}, {d if kn else 0}")
            if ilv and n+1<NST*4: reads(n+1,(cc,) if p<4 else (0,1))
            if cc==0:
                for _ in range(free): issue_item()
            if kn>=3: drain(2 if p<4 else 4)
        if kn==35:
            assert not pend
            if p<4: so=[f"s_add_u32 s{S_T}, s{S_FC}, {p*2048+cc*512}" for cc in range(2)]
            else: so=[f"s_mov_b32 s{S_T}, s{S_FCH}"]
            pend=silu_ops(acc,2 if p<4 else 1,so,sc)
        if pass_hook: pass_hook(n)
    if tail:
        a("s_nop 15")
        drain(1000)
    return pend,drain

BASES=[0,1,2,3,4,5,6,7,256,258,260,262,512,516,768,772,1024,1280,1536,1792,2048]
SSM_LDS=16384
def ssm_params(a,sD,v):
    R=68
    a(f"s_lshl_b32 s72, s{sD}, 8\nv_lshlrev_b32 v1, 2, v0")
    for i,p in enumerate([P_ARE,P_AIM,P_BRE,P_BIM,P_CRE,P_CIM]):
        srd(a,R,p,576*256)
        a.vmem(f"buffer_load_dword v{v+i}, v1, {sr(R,4)}, s72 offen","par")
    a(f"s_lshl_b32 s73, s{sD}, 1\nv_mov_b32 v10, 0")
    srd(a,R,P_LDT,1152); a.vmem(f"buffer_load_ushort v{v+6}, v10, {sr(R,4)}, s73 offen","par")
    srd(a,R,P_DSK,1152); a.vmem(f"buffer_load_ushort v{v+7}, v10, {sr(R,4)}, s73 offen","par")
def ssm_wave(a,sD,sLB,sc_ld="",sc_st="",pre_u_hook=None,params=True,st=None):
    R=68; YT=0; XT=32*272
    KR0=0; KR1=4160; UZ=8320; U0=8832; T2=12928
    if params: ssm_params(a,sD,2)
    else: a("v_lshlrev_b32 v1, 2, v0")
    a(f"v_add_u32 v11, s{sLB}, v1")
    a(f"v_and_b32 v12, 31, v0\nv_lshrrev_b32 v13, 5, v0\nv_mul_u32_u24 v14, 272, v12\nv_lshl_add_u32 v14, v13, 4, v14\nv_add_u32 v14, s{sLB}, v14")
    if pre_u_hook: pre_u_hook()
    srd(a,R,P_WS,T_SZ,XT_OFF)
    a(f"s_lshl_b32 s72, s{sD}, 12\nv_lshlrev_b32 v1, 4, v0")
    for i in range(4): a.vmem(f"buffer_load_dwordx4 {vr(120+4*i,4)}, v1, {sr(R,4)}, s72 offen offset:{1024*i} {sc_ld}","u")
    a.wait_vm("par")
    hi=f2u(LOG2E); lo=f2u(LOG2E-struct.unpack("<f",struct.pack("<I",hi))[0])
    a(f"""v_lshlrev_b32 v8, 16, v8
    s_mov_b32 s74, {hi:#x}
    v_mul_f32 v15, s74, v8
    v_fma_f32 v16, v8, s74, -v15
    v_fmac_f32 v16, {lo:#x}, v8
    v_exp_f32 v15, v15
    v_mul_f32 v16, {f2u(math.log(2)):#x}, v16
    v_fma_f32 v15, v15, v16, v15
    v_cvt_pk_bf16_f32 v15, v15, v15
    v_lshlrev_b32 v8, 16, v15""")
    KA=100
    PK=OPT.get("pk")
    def cmul(L,d,x,y,t):
        assert d!=x and d!=y
        if PK:
            L.append(f"v_pk_mul_f32 {vr(t,2)}, {vr(x,2)}, {vr(y,2)} op_sel:[1,1] op_sel_hi:[1,0]")
            L.append(f"v_pk_fma_f32 {vr(d,2)}, {vr(x,2)}, {vr(y,2)}, {vr(t,2)} op_sel:[0,0,0] op_sel_hi:[0,1,1] neg_lo:[0,0,1]")
        else:
            L+= [f"v_mul_f32 v{t}, v{x+1}, v{y+1}",f"v_mul_f32 v{t+1}, v{x+1}, v{y}",f"v_fma_f32 v{d}, v{x}, v{y}, -v{t}",f"v_fma_f32 v{d+1}, v{x}, v{y+1}, v{t+1}"]
    def put(L,off,x,neg,r):
        L+= [f"v_cvt_pk_bf16_f32 v{r}, v{x}, {'-' if neg else ''}v{x+1}",f"ds_write_b32 v11, v{r} offset:{off}"]
    for rnd in range(2):
        for i in range(6): a(f"v_lshlrev_b32 v{22+i}, 16, v{2+i}" if rnd==0 else f"v_and_b32 v{22+i}, 0xffff0000, v{2+i}")
        a(f"""v_mul_f32 v22, v8, v22
        v_mul_f32 v23, v8, v23
        v_mul_f32 v24, v8, v24
        v_mul_f32 v25, v8, v25
        v_mul_f32 v20, {f2u(LOG2E):#x}, v22
        v_mul_f32 v21, {f2u(1/(2*math.pi)):#x}, v23""")
        E=[]
        for k,(d,p) in enumerate([(30,1),(32,8),(34,256)]):
            t=56+2*k
            E.append([f"v_mul_f32 v{t}, {f2u(float(p)):#x}, v20",f"v_mul_f32 v{t+1}, {f2u(float(p)):#x}, v21",f"v_exp_f32 v{t}, v{t}",f"v_fract_f32 v{t+1}, v{t+1}",f"v_cos_f32 v{d}, v{t+1}",f"v_sin_f32 v{d+1}, v{t+1}",f"v_mul_f32 v{d}, v{t}, v{d}",f"v_mul_f32 v{d+1}, v{t}, v{d+1}"])
        L=[]; cmul(L,28,24,26,40)
        for x in L: a(x)
        for row in zip(*E):
            for x in row: a(x)
        Y=["v_mov_b32 v48, 0x3f80",f"ds_write_b32 v11, v48 offset:{YT}"]; put(Y,YT+272,32,False,44)
        cur=32
        for aa in range(2,32):
            d=36 if cur!=36 else 38
            cmul(Y,d,cur,32,40); put(Y,YT+272*aa,d,False,44+aa%2); cur=d
        X=[]; row=lambda b: XT+272*BASES.index(b); n=[0]
        def xp(b,x): put(X,row(b),x,True,46+n[0]%2); n[0]+=1
        xp(0,28); cur=28
        for b in range(1,8):
            d=62 if cur!=62 else 64
            cmul(X,d,cur,30,42); xp(b,d); cur=d
        cmul(X,50,30,30,42); cmul(X,52,50,50,42)
        cmul(X,54,28,34,42); xp(256,54)
        cmul(X,62,54,50,42); xp(258,62); cmul(X,64,62,50,42); xp(260,64); cmul(X,62,64,50,42); xp(262,62)
        cmul(X,28,54,34,42); xp(512,28); cmul(X,62,28,52,42); xp(516,62)
        cmul(X,54,28,34,42); xp(768,54); cmul(X,62,54,52,42); xp(772,62)
        cur=54
        for b in [1024,1280,1536,1792,2048]:
            d=28 if cur!=28 else 54
            cmul(X,d,cur,34,42); xp(b,d); cur=d
        while X or Y:
            if Y: a(Y.pop(0))
            if X: a(X.pop(0))
        a("s_waitcnt lgkmcnt(0)")
        for s_ in range(8):
            a(f"ds_read_b128 {vr(136+8*s_,4)}, v14 offset:{YT+32*s_}\nds_read_b128 {vr(140+8*s_,4)}, v14 offset:{XT+32*s_}")
        for q in range(8):
            a(f"s_waitcnt lgkmcnt({14-2*q})")
            a(f"v_mfma_f32_32x32x16_bf16 {vr(KA,16)}, {vr(136+8*q,4)}, {vr(140+8*q,4)}, {vr(KA,16) if (rnd or q) else 0}")
    if st: st(0)
    a("""v_and_b32 v15, 3, v12
    v_lshlrev_b32 v16, 1, v15
    v_add_u32 v16, 256, v16
    v_and_b32 v17, 1, v12
    v_lshlrev_b32 v17, 2, v17
    v_bfe_u32 v18, v12, 1, 1
    v_lshl_add_u32 v17, v18, 8, v17
    v_add_u32 v17, 512, v17
    v_subrev_u32 v18, 12, v12
    v_lshlrev_b32 v18, 8, v18
    v_cmp_gt_u32 vcc, 16, v12
    v_cmp_gt_u32 s[76:77], 12, v12
    v_cmp_gt_u32 s[78:79], 8, v12
    v_cndmask_b32 v18, v18, v17, vcc
    v_cndmask_b32 v18, v18, v16, s[76:77]
    v_cmp_gt_u32 vcc, 21, v12
    v_cndmask_b32 v18, v18, v12, s[78:79]
    v_lshlrev_b32 v18, 1, v18
    v_lshl_add_u32 v18, v13, 6, v18""")
    a(f"v_add_u32 v18, s{sLB}, v18\nv_lshl_add_u32 v16, v0, 4, s{sLB}")
    for j in range(8): a(f"v_cvt_pk_bf16_f32 v{56+j}, v{KA+2*j}, v{KA+2*j+1}")
    a("s_and_saveexec_b64 s[76:77], vcc")
    for r in range(16):
        aa=8*(r//4)+r%4
        a(f"ds_write_b16{'_d16_hi' if r%2 else ''} v18, v{56+r//2} offset:{T2+16*aa}")
    a("s_mov_b64 exec, s[76:77]")
    a.wait_vm("u")
    for i in range(4): a(f"ds_write_b128 v16, {vr(120+4*i,4)} offset:{U0+1024*i}")
    a("v_mov_b32 v40, 0\nv_mov_b32 v41, 0\nv_mov_b32 v42, 0\nv_mov_b32 v43, 0\nv_cmp_gt_u32 vcc, 32, v0\ns_and_saveexec_b64 s[76:77], vcc")
    a(f"ds_write_b128 v16, v[40:43] offset:{UZ}\ns_mov_b64 exec, 15\nds_write_b128 v16, v[40:43] offset:{KR0+4096}\nds_write_b128 v16, v[40:43] offset:{KR1+4096}\ns_mov_b64 exec, s[76:77]")
    a(f"v_sub_u32 v17, 63, v0\nv_lshl_add_u32 v17, v17, 4, s{sLB}\nv_lshlrev_b32 v15, 3, v0\nv_sub_u32 v15, 511, v15")
    for e in range(9): a(f"v_subrev_u32 v{20+e}, {e}, v15")
    a("v_max_i32 v28, 0, v28")
    for e in range(9): a(f"v_cvt_f32_u32 v{20+e}, v{20+e}")
    for e in range(9): a(f"v_cvt_pk_bf16_f32 v{20+e}, v{20+e}, v{20+e}")
    for e in range(9): a(f"v_and_b32 v{20+e}, 0xffff0000, v{20+e}")
    for e in range(9): a(f"v_cvt_u32_f32 v{20+e}, v{20+e}")
    for e in range(9): a(f"v_lshl_add_u32 v{20+e}, v{20+e}, 1, s{sLB}")
    a("s_waitcnt lgkmcnt(0)")
    for i in range(2): a(f"ds_read_u16 v{60+2*i}, v17 offset:{T2+1024*(3-i)+16}\nds_read_u16 v{61+2*i}, v17 offset:{T2+1024*(3-i)}")
    for k in range(3): a(f"ds_read_u16 v{64+k}, v17 offset:{T2+1024+16-8*k}")
    for e in range(9): a(f"ds_read_u16 v{30+e}, v{20+e} offset:{T2}")
    a("v_and_b32 v15, 1, v0\nv_cmp_eq_u32 vcc, 0, v15\ns_mov_b32 s74, 0x10001\ns_waitcnt lgkmcnt(12)")
    for i in range(2):
        h,l_=60+2*i,61+2*i; o=68+8*i
        a(f"""v_cndmask_b32 v15, v{l_}, v{h}, vcc
        v_mul_u32_u24 v{o}, s74, v{h}
        v_mul_u32_u24 v{o+2}, s74, v{l_}
        v_lshl_or_b32 v{o+1}, v15, 16, v{h}
        v_lshl_or_b32 v{o+5}, v{l_}, 16, v15
        v_mov_b32 v{o+3}, v{o+2}
        v_mov_b32 v{o+4}, v{o}
        v_mov_b32 v{o+6}, v{o+2}
        v_mov_b32 v{o+7}, v{o+2}
        ds_write_b128 v16, {vr(o,4)} offset:{KR0+1024*i}
        ds_write_b128 v16, {vr(o+4,4)} offset:{KR1+1024*i}""")
    a(f"""s_waitcnt lgkmcnt(13)
    v_mul_u32_u24 v84, s74, v64
    v_mul_u32_u24 v85, s74, v65
    v_lshl_or_b32 v86, v66, 16, v65
    v_mul_u32_u24 v87, s74, v66
    v_lshl_or_b32 v88, v65, 16, v64
    v_mov_b32 v89, v85
    v_mov_b32 v90, v87
    v_mov_b32 v91, v87
    ds_write_b128 v16, v[84:87] offset:{KR0+2048}
    ds_write_b128 v16, v[88:91] offset:{KR1+2048}
    v_cmp_eq_u32 vcc, 63, v0
    s_waitcnt lgkmcnt(6)
    s_nop 0
    v_cndmask_b32 v38, v38, 0, vcc""")
    for e in range(4): a(f"v_lshl_or_b32 v{40+e}, v{31+2*e}, 16, v{30+2*e}")
    for e in range(4): a(f"v_lshl_or_b32 v{44+e}, v{32+2*e}, 16, v{31+2*e}")
    a(f"ds_write_b128 v16, v[40:43] offset:{KR0+3072}\nds_write_b128 v16, v[44:47] offset:{KR1+3072}")
    a(f"""v_and_b32 v12, 15, v0
    v_lshrrev_b32 v13, 4, v0
    v_or_b32 v15, 1, v12
    v_sub_u32 v15, {2031-256}, v15
    v_lshlrev_b32 v15, 1, v15
    v_and_b32 v17, 1, v12
    v_sub_u32 v17, 1, v17
    v_mul_u32_u24 v17, {KR1}, v17
    v_add3_u32 v15, v15, v17, s{sLB}
    v_lshl_add_u32 v20, v13, 4, v15
    v_subrev_u32 v21, 1024, v20
    v_subrev_u32 v22, 2048, v20
    v_subrev_u32 v23, 3072, v20
    v_lshlrev_b32 v24, 5, v12
    v_lshl_add_u32 v24, v13, 4, v24
    v_add_u32 v24, s{sLB}, v24
    v_add_u32 v24, {U0-32}, v24
    v_lshrrev_b32 v15, 3, v12
    v_add_u32 v15, 2, v15
    v_cmp_eq_u32 vcc, v15, v13
    v_and_b32 v15, 1, v12
    v_lshlrev_b32 v15, 4, v15
    v_lshlrev_b32 v15, v15, v9
    v_cndmask_b32 v15, 0, v15, vcc
    v_bfe_u32 v17, v12, 1, 2""")
    for j in range(4): a(f"v_cmp_eq_u32 {'vcc' if j==0 else sr(72+2*j,2)}, {j}, v17")
    for j in range(4): a(f"v_cndmask_b32 v{28+j}, 0, v15, {'vcc' if j==0 else sr(72+2*j,2)}")
    a(f"v_and_b32 v15, 1, v13\nv_lshlrev_b32 v1, 9, v15\nv_lshl_add_u32 v1, v12, 5, v1\nv_lshrrev_b32 v15, 1, v13\nv_lshl_add_u32 v1, v15, 4, v1")
    a("s_waitcnt lgkmcnt(0)")
    if st: st(1)
    AC=32; FB=64
    def rd(r):
        f=FB+64*(r%2); L=[]
        if r: L+=[f"v_subrev_u32 v{x}, 64, v{x}" for x in range(20,25)]
        for k in range(8):
            o=128*(1-k%2)
            L.append(f"ds_read_b128 {vr(f+32+4*k,4)}, v24 offset:{512*k}")
            L.append(f"ds_read2_b32 {vr(f+4*k,2)}, v{20+k//2} offset0:{o} offset1:{o+1}")
            L.append(f"ds_read2_b32 {vr(f+4*k+2,2)}, v{20+k//2} offset0:{o+2} offset1:{o+3}")
        return L
    for x in rd(0): a(x)
    for r in range(8):
        f=FB+64*(r%2); a("s_waitcnt lgkmcnt(0)")
        L=rd(r+1) if r<7 else []
        if r==0:
            for c in range(8):
                a(f"v_mfma_f32_16x16x32_bf16 {vr(AC+4*c,4)}, v[28:31], {vr(f+32+4*c,4)}, 0")
        for ii in range(8):
            for m in range(8-ii):
                d=vr(AC+4*(ii+m),4)
                a(f"v_mfma_f32_16x16x32_bf16 {d}, {vr(f+4*ii,4)}, {vr(f+32+4*m,4)}, {d}")
                if L: a(L.pop(0))
        assert not L
    if st: st(2)
    srd(a,R,P_WS,T_SZ,AT_OFF)
    a(f"s_lshl_b32 s72, s{sD}, 12\ns_nop 2")
    for c in range(8): a(f"v_cvt_pk_bf16_f32 v{64+2*c}, v{AC+4*c}, v{AC+4*c+1}\nv_cvt_pk_bf16_f32 v{65+2*c}, v{AC+4*c+2}, v{AC+4*c+3}")
    a("s_nop 1")
    for k in range(4):
        a(f"v_permlane16_swap_b32 v{64+4*k}, v{66+4*k}\nv_permlane16_swap_b32 v{65+4*k}, v{67+4*k}")
    for k in range(4): a.vmem(f"buffer_store_dwordx4 {vr(64+4*k,4)}, v1, {sr(R,4)}, s72 offen offset:{1024*k} {sc_st}","ast")
SSM_LDS=8320+5200+4608
SSM_LDS=18176

B_VH,B_VW,B_VR=2,7,11
B_ACC=16; B_HB=96; B_FR=200; B_AT=232; B_G=242; B_VO=247; B_VAD=248; B_VAR=251; B_VRED=252
SB_H,SB_W,SB_O,SB_A,SB_G=40,44,48,68,72
SB_MT,SB_NT,SB_KQ,SB_BH,SB_BW,SB_M0,SB_T,SB_T2=52,53,54,55,56,57,58,59
def b_chunks():
    c=[]
    for p in range(4):
        for i in range(4):
            for fh in range(2): c.append(9*i+(i&1)+2*p+fh)
    for i in range(4): c.append(9*i+(8 if i%2==0 else 0))
    assert sorted(c)==list(range(36))
    return c
def phaseB_map(a,sid,endlabel):
    a(f"""s_and_b32 s60, s{sid}, 7
    s_lshr_b32 s61, s{sid}, 3
    s_cmp_ge_u32 s61, 30
    s_cbranch_scc1 {endlabel}
    s_mul_i32 s60, s60, 30
    s_add_u32 s60, s60, s61
    s_cmp_ge_u32 s60, 234
    s_cbranch_scc1 {endlabel}
    s_mul_hi_u32 s{SB_MT}, s60, {(2**32+8)//9:#x}
    s_mul_i32 s61, s{SB_MT}, 9
    s_sub_u32 s{SB_NT}, s60, s61""")
def phaseB_setup(a,NS,ldsbase=0):
    a(f"s_and_b32 s{SB_KQ}, s{SW}, 3")
    srd(a,SB_H,P_WS,H_SZ,H_OFF); srd(a,SB_W,P_WD,4608*1152); srd(a,SB_O,P_OUT,2048*1152)
    srd(a,SB_A,P_WS,T_SZ,AT_OFF); srd(a,SB_G,P_WS,8192,G_OFF)
    a(f"""s_mul_i32 s{SB_BH}, s{SB_KQ}, {36*1024}
    s_mul_i32 s{SB_BW}, s{SB_KQ}, {36*36864}
    s_mul_i32 s{SB_M0}, s{SB_KQ}, {NS*4096}
    s_add_u32 s{SB_M0}, s{SB_M0}, {ldsbase}
    s_mul_i32 s60, s{SB_MT}, {5*147456}
    v_lshl_add_u32 v{B_VH}, v0, 4, s60""")
    for j in range(1,5): a(f"v_add_u32 v{B_VH+j}, {147456*j}, v{B_VH}")
    a(f"""v_lshrrev_b32 v15, 3, v0
    v_bfe_u32 v1, v0, 1, 2
    v_bfe_u32 v{B_VW+1}, v0, 4, 2
    v_xor_b32 v1, v1, v{B_VW+1}
    v_and_b32 v{B_VW+1}, 1, v0
    v_lshlrev_b32 v{B_VW+1}, 4, v{B_VW+1}
    v_lshl_add_u32 v1, v1, 5, v{B_VW+1}
    v_mul_u32_u24 v15, 1152, v15
    s_lshl_b32 s60, s{SB_NT}, 7
    v_add3_u32 v{B_VW}, v1, v15, s60""")
    for i in range(1,4): a(f"v_add_u32 v{B_VW+i}, {8192*i}, v{B_VW}")
def phaseB_setup2(a,NS,aslot):
    if OPT.get("h4"):
        a(f"""v_lshrrev_b32 v15, 2, v0
        v_bfe_u32 v1, v0, 3, 2
        v_lshlrev_b32 v1, 5, v1
        v_lshl_add_u32 v1, v15, 7, v1
        v_and_b32 v15, 3, v0
        v_lshl_add_u32 v1, v15, 3, v1
        v_add_u32 v{B_VR}, s{SB_M0}, v1""")
    else: phaseB_setup2a(a)
    phaseB_setup2b(a,NS,aslot)
def phaseB_setup2a(a):
    a(f"""v_bfe_u32 v1, v0, 2, 3
    v_lshrrev_b32 v15, 5, v0
    v_lshl_add_u32 v15, v15, 4, v1
    v_lshrrev_b32 v1, 1, v1
    v_lshlrev_b32 v1, 5, v1
    v_lshl_add_u32 v1, v15, 7, v1
    v_and_b32 v15, 3, v0
    v_lshl_add_u32 v1, v15, 3, v1
    v_add_u32 v{B_VR}, s{SB_M0}, v1""")
def phaseB_setup2b(a,NS,aslot):
    for d in range(1,4): a(f"v_xor_b32 v{B_VR+d}, {32*d}, v{B_VR}")
    a(f"""s_lshl_b32 s60, s{SB_NT}, 6
    s_lshl_b32 s61, s{SB_KQ}, 4
    s_add_u32 s60, s60, s61
    s_lshl_b32 s61, s60, 12
    s_mul_i32 s62, s{SB_MT}, 160
    s_add_u32 s61, s61, s62""")
    for i in range(3):
        a(f"""v_add_u32 v1, {64*i}, v0
        v_mul_u32_u24 v15, 6554, v1
        v_lshrrev_b32 v15, 16, v15
        v_mul_u32_u24 v{B_VAD+i}, {4096-160}, v15
        v_lshl_add_u32 v{B_VAD+i}, v1, 4, v{B_VAD+i}
        v_add_u32 v{B_VAD+i}, s61, v{B_VAD+i}""")
        if i: a(f"v_subrev_u32 v{B_VAD+i}, {1024*i}, v{B_VAD+i}")
    a(f"v_cmp_gt_u32 vcc, 32, v0\nv_mov_b32 v1, {BIG:#x}\ns_nop 0\nv_cndmask_b32 v{B_VAD+2}, v1, v{B_VAD+2}, vcc")
    a(f"""v_lshrrev_b32 v1, 2, v0
    v_mul_u32_u24 v1, 160, v1
    v_and_b32 v15, 3, v0
    v_lshl_add_u32 v1, v15, 3, v1
    v_add_u32 v{B_VAR}, s{SB_M0}, v1""")
    a(f"""s_mul_i32 s62, s{SB_MT}, 80
    v_and_b32 v1, 15, v0
    v_add_u32 v1, s62, v1
    v_lshlrev_b32 v{B_G}, 2, v1
    v_mul_u32_u24 v1, 1152, v1
    v_lshrrev_b32 v15, 4, v0
    v_lshl_add_u32 v1, v15, 3, v1
    s_lshl_b32 s60, s60, 1
    v_add_u32 v{B_VO}, s60, v1
    v_lshl_add_u32 v{B_VRED}, v0, 4, s{SB_M0}""")
def phaseB(a,PD=4,ldsbase=0,sc_h="",sc_a="",sc_o="",step_hook=None,pre_at_hook=None,at_step=None,bar="s_barrier"):
    NS=PD+1; C=b_chunks(); N=36
    if at_step is None: at_step=N-NS
    aslot=(N-NS)%NS
    def issue_w(n,i):
        if n>=N: return
        if i==0: a(f"s_add_u32 m0, s{SB_M0}, {(n%NS)*4096}\ns_add_u32 s{SB_T2}, s{SB_BW}, {C[n]*36864}")
        a.vmem(f"buffer_load_dwordx4 v{B_VW+i}, {sr(SB_W,4)}, s{SB_T2} offen offset:{1024*i} lds",("W",n))
    def issue_h(n,j):
        if n>=N: return
        if j==0: a(f"s_add_u32 s{SB_T}, s{SB_BH}, {C[n]*1024}")
        a.vmem(f"buffer_load_dwordx4 {vr(B_HB+20*(n%PD)+4*j,4)}, v{B_VH+j}, {sr(SB_H,4)}, s{SB_T} offen {sc_h}",("h",n))
    def reads(n):
        for d in range(4):
            for t in range(2):
                a.lds(f"ds_read_b64_tr_b16 {vr(B_FR+16*(n%2)+4*d+2*t,2)}, v{B_VR+d} offset:{(n%NS)*4096+(2048 if OPT.get('h4') else 1024)*t}",("f",n))
    def issue_at():
        if pre_at_hook: pre_at_hook()
        a(f"s_add_u32 m0, s{SB_M0}, {aslot*4096}\ns_nop 0")
        for i in range(3): a.vmem(f"buffer_load_dwordx4 v{B_VAD+i}, {sr(SB_A,4)}, 0 offen offset:{1024*i} lds {sc_a}","at")
        for j in range(4,-1,-1): a.vmem(f"buffer_load_dword v{B_G+j}, v{B_G}, {sr(SB_G,4)}, 0 offen offset:{64*j} {sc_a}","at")
    for i in range(4): issue_w(0,i)
    for n in range(PD):
        if step_hook: step_hook(n-PD)
        for i in range(4): issue_w(n+1,i)
        for j in range(5): issue_h(n,j)
    phaseB_setup2(a,NS,aslot)
    a.wait_vm(("W",0)); reads(0)
    for n in range(N):
        if step_hook: step_hook(n)
        a.wait_vm(("h",n)); a.wait_vm(("W",n+1))
        a.wait_lg(("f",n))
        if n+1<N: reads(n+1)
        for j in range(5):
            for d in range(4):
                acc=vr(B_ACC+16*j+4*d,4)
                a(f"v_mfma_f32_16x16x32_bf16 {acc}, {vr(B_FR+16*(n%2)+4*d,4)}, {vr(B_HB+20*(n%PD)+4*j,4)}, {acc if n else 0}")
                if j<4 and d==0: issue_w(n+NS,j)
            issue_h(n+PD,j)
        if n==at_step: issue_at()
    if at_step>=N: issue_at()
    a("s_nop 7"); a.wait_vm("at")
    for j in range(5): a.lds(f"ds_read_b64_tr_b16 {vr(B_AT+2*j,2)}, v{B_VAR} offset:{aslot*4096+32*j}","a")
    a.wait_lg("a")
    lab=f"pb{id(a)%100000}"
    for k in range(4):
        a(f"s_cmp_lg_u32 s{SB_KQ}, {k}\ns_cbranch_scc1 {lab}_w{k}")
        for d in range(4):
            if d==k: continue
            for j in range(5): a(f"ds_write_b128 v{B_VRED}, {vr(B_ACC+16*j+4*d,4)} offset:{(d*5+j)*1024}")
        for j in range(5):
            for i in range(4):
                if k: a(f"v_mov_b32 v{B_ACC+16*j+i}, v{B_ACC+16*j+4*k+i}")
        a(f"{lab}_w{k}:")
    a(f"""s_mul_i32 s60, s{SB_KQ}, 5120
    s_add_u32 s60, s60, {ldsbase}
    v_lshl_add_u32 v1, v0, 4, s60
    s_waitcnt lgkmcnt(0)
    {bar}""")
    for o in range(1,4):
        a(f"s_add_u32 s60, s{SB_KQ}, {o}\ns_and_b32 s60, s60, 3\ns_mul_i32 s60, s60, {NS*4096}\nv_add_u32 v15, s60, v1")
        for j in range(5): a.lds(f"ds_read_b128 {vr(B_HB+20*(o-1)+4*j,4)}, v15 offset:{j*1024}",("r",o))
    for o in range(1,4):
        a.wait_lg(("r",o))
        for j in range(5):
            for i in range(0,4,2): a(f"v_pk_add_f32 {vr(B_ACC+16*j+i,2)}, {vr(B_ACC+16*j+i,2)}, {vr(B_HB+20*(o-1)+4*j+i,2)}")
    for j in range(5):
        b=B_ACC+16*j; t=B_ACC+16*j+4; u=B_AT+2*j
        a(f"""v_lshlrev_b32 v{t}, 16, v{u}
        v_and_b32 v{t+1}, 0xffff0000, v{u}
        v_lshlrev_b32 v{t+2}, 16, v{u+1}
        v_and_b32 v{t+3}, 0xffff0000, v{u+1}""")
        for i in range(4): a(f"v_sub_f32 v{t+i}, v{t+i}, v{b+i}")
        for i in range(4): a(f"v_fmac_f32 v{b+i}, v{B_G+j}, v{t+i}")
        a(f"v_cvt_pk_bf16_f32 v{b}, v{b}, v{b+1}\nv_cvt_pk_bf16_f32 v{b+1}, v{b+2}, v{b+3}")
        a(f"s_mov_b32 s60, {16*1152*j}")
        a.vmem(f"buffer_store_dwordx2 {vr(b,2)}, v{B_VO}, {sr(SB_O,4)}, s60 offen {sc_o}","o")

A4_ACC=[64,128]; A4_FR=32; A4_XV=192
A4_VT=224; A4_VP=240
A4_VA=2
A4_VAH=6; A4_VOW=8; A4_VOX=12; A4_VOH=16; A4_VXR=17
def xf(i): return f"a[{4*i}:{4*i+3}]" if i<64 else vr(A4_XV+4*(i-64),4)
def phaseA4_setup(a):
    a(f"""s_and_b32 s60, s2, 7
    s_lshr_b32 s61, s2, 3
    s_and_b32 s62, s60, 1
    s_lshl_b32 s62, s62, 3
    s_and_b32 s63, s61, 7
    s_add_u32 s{S_MI}, s62, s63
    s_lshr_b32 s62, s60, 1
    s_lshl_b32 s62, s62, 2
    s_lshr_b32 s63, s61, 3
    s_add_u32 s{S_FJ}, s62, s63
    s_and_b32 s{S_MW}, s{SW}, 1
    s_lshr_b32 s{S_FH}, s{SW}, 1""")
    srd(a,S_X,P_X,2048*1152)
    a(f"s_cmp_eq_u32 s{S_FH}, 0\ns_cselect_b32 s{S_W}, s{P_WG}, s{P_WU}\ns_cselect_b32 s{S_W+1}, s{P_WG+1}, s{P_WU+1}\ns_mov_b32 s{S_W+2}, {576*9216:#x}\ns_mov_b32 s{S_W+3}, 0x20000")
    a(f"""s_and_b32 s60, s{S_FJ}, 1
    s_mul_i32 s61, s{S_FJ}, 9
    s_add_u32 s62, s61, s60
    s_lshl_b32 s{S_LINE}, s62, 6
    s_add_u32 s63, s{S_LINE}, 512
    s_sub_u32 s64, s{S_LINE}, 128
    s_cmp_eq_u32 s60, 0
    s_cselect_b32 s{S_LINEH}, s63, s64
    s_lshl_b32 s{S_M0}, s{SW}, 12""")
    a(f"""v_lshrrev_b32 v20, 3, v0
    v_bfe_u32 v21, v0, 1, 2
    v_bfe_u32 v22, v0, 4, 1
    v_xor_b32 v21, v21, v22
    v_and_b32 v22, 1, v0
    v_lshlrev_b32 v22, 4, v22
    v_lshl_add_u32 v21, v21, 5, v22
    s_lshl_b32 s63, s{S_MW}, 5
    v_add_u32 v22, s63, v20
    v_mul_u32_u24 v22, 9216, v22
    v_add_u32 v{A4_VOW}, v21, v22
    v_xor_b32 v21, 64, v21
    v_add_u32 v{A4_VOW+1}, v21, v22
    v_add_u32 v{A4_VOW+1}, {8*9216-1024}, v{A4_VOW+1}
    v_add_u32 v{A4_VOW+2}, {2*(8*9216-1024)}, v{A4_VOW}
    v_add_u32 v{A4_VOW+3}, {2*(8*9216-1024)}, v{A4_VOW+1}""")
    a(f"""s_lshl_b32 s63, s{S_MI}, 7
    s_lshl_b32 s64, s{SW}, 5
    s_add_u32 s63, s63, s64
    v_add_u32 v22, s63, v20
    v_mul_u32_u24 v22, 1152, v22
    v_and_b32 v21, 7, v0
    v_lshrrev_b32 v23, 4, v0
    v_xor_b32 v21, v21, v23
    v_lshl_add_u32 v{A4_VOX}, v21, 4, v22
    v_xor_b32 v21, 4, v21
    v_lshl_add_u32 v{A4_VOX+1}, v21, 4, v22
    v_add_u32 v{A4_VOX+1}, {8*1152-1024}, v{A4_VOX+1}
    v_add_u32 v{A4_VOX+2}, {2*(8*1152-1024)}, v{A4_VOX}
    v_add_u32 v{A4_VOX+3}, {2*(8*1152-1024)}, v{A4_VOX+1}""")
def phaseA4_setup2(a):
    srd(a,S_H,P_WS,H_SZ,H_OFF)
    a(f"""s_and_b32 s60, s{S_FJ}, 1
    s_mul_i32 s61, s{S_FJ}, 9
    s_add_u32 s62, s61, s60
    s_add_u32 s62, s62, s{S_FH}
    s_lshl_b32 s{S_FC}, s62, 10
    s_add_u32 s63, s61, 8
    s_cmp_eq_u32 s60, 0
    s_cselect_b32 s63, s63, s61
    s_lshl_b32 s63, s63, 10
    s_lshl_b32 s64, s{S_FH}, 3
    s_add_u32 s{S_FCH}, s63, s64""")
    a(f"""v_lshrrev_b32 v20, 4, v0
    v_bfe_u32 v21, v0, 2, 2
    v_lshl_add_u32 v22, v20, 3, v21
    v_lshlrev_b32 v22, 7, v22
    v_and_b32 v23, 3, v0
    v_lshl_add_u32 v22, v23, 3, v22
    v_bfe_u32 v23, v0, 3, 2
    s_lshl_b32 s62, s{S_FH}, 1
    v_xor_b32 v24, s62, v23
    v_lshl_add_u32 v{A4_VA}, v24, 5, v22
    v_xor_b32 v{A4_VA+1}, 32, v{A4_VA}
    v_add_u32 v{A4_VA+2}, 8192, v{A4_VA}
    v_add_u32 v{A4_VA+3}, 8192, v{A4_VA+1}
    s_lshl_b32 s62, s60, 1
    s_add_u32 s62, s62, s{S_FH}
    v_xor_b32 v24, s62, v23
    v_lshl_add_u32 v{A4_VAH}, v24, 5, v22
    v_add_u32 v{A4_VAH+1}, 8192, v{A4_VAH}""")
    a(f"""v_and_b32 v21, 15, v0
    s_lshl_b32 s62, s{S_MW}, 6
    v_add_u32 v22, s62, v21
    v_bfe_u32 v23, v0, 1, 3
    v_xor_b32 v23, v23, v20
    v_lshlrev_b32 v23, 4, v23
    v_lshl_add_u32 v{A4_VXR}, v22, 7, v23
    v_xor_b32 v{A4_VXR+1}, 64, v{A4_VXR}""")
    a(f"""s_lshl_b32 s62, s{S_MI}, 3
    s_lshl_b32 s63, s{S_MW}, 2
    s_add_u32 s62, s62, s63
    s_mul_i32 s62, s62, 147456
    v_lshl_add_u32 v{A4_VOH}, v0, 4, s62""")
def silu4(acc,half,sbase,soff):
    ops=[]; T=A4_VT
    for g in range(4):
        if not half: G=[acc+16*0+4*g+i for i in range(4)]+[acc+16*1+4*g+i for i in range(4)]; U=[x+32 for x in G]
        else: G=[acc+4*g+i for i in range(4)]; U=[x+32 for x in G]
        n=len(G); t=T+8*(g%2); P=A4_VP+4*g
        ops+= [f"v_mul_f32 v{t+i}, {f2u(-LOG2E):#x}, v{G[i]}" for i in range(n)]
        ops+= [f"v_exp_f32 v{t+i}, v{t+i}" for i in range(n)]
        ops+= [f"v_mul_f32 v{U[i]}, v{G[i]}, v{U[i]}" for i in range(n)]
        ops+= [f"v_add_f32 v{t+i}, 1.0, v{t+i}" for i in range(n)]
        ops+= [f"v_rcp_f32 v{t+i}, v{t+i}" for i in range(n)]
        ops.append("NOP")
        ops+= [f"v_mul_f32 v{U[i]}, v{U[i]}, v{t+i}" for i in range(n)]
        ops+= [f"v_cvt_pk_bf16_f32 v{P+i}, v{U[2*i]}, v{U[2*i+1]}" for i in range(n//2)]
        ops.append(f"s_add_u32 s{S_T}, s{sbase}, {soff+147456*g}")
        ops.append(("st",P,n//2))
    return ops
def cost(op):
    if isinstance(op,tuple): return 4
    return 8 if op.startswith(("v_exp","v_rcp")) else 4
def phaseA4(a,nslots=10,sc="",pre_hook=None,step_hook=None,tail=True,side=None):
    NST=45; items=[]
    for t in range(NST):
        if t<9: items.append(("X",t))
        items.append(("W",t))
    slot_of={it:i%nslots for i,it in enumerate(items)}
    nxt=[0]
    def item_ops():
        if nxt[0]>=len(items): return []
        it=items[nxt[0]]; nxt[0]+=1
        if OPT.get("nodma") and nxt[0]>20: return []
        k,t=it; p,tt=divmod(t,9)
        o=[f"s_add_u32 m0, s{S_M0}, {slot_of[it]*SLOT}"]
        if k=="X": o.append(f"s_movk_i32 s61, {tt*128}"); vo,sd=A4_VOX,S_X
        else: o.append(f"s_add_u32 s61, s{S_LINE if p<4 else S_LINEH}, {tt*64*9216+(p*128 if p<4 else 0)}"); vo,sd=A4_VOW,S_W
        for i in range(4): o.append(("vm",f"buffer_load_dwordx4 v{vo+i}, {sr(sd,4)}, s61 offen offset:{1024*i} lds",("st",t)))
        return o
    def emit(op):
        if isinstance(op,tuple):
            if op[0]=="vm": a.vmem(op[1],op[2])
            elif op[0]=="lds": a.lds(op[1],op[2])
            elif op[0]=="st": a.vmem(f"buffer_store_dwordx{op[2]} {vr(op[1],op[2])}, v{A4_VOH}, {sr(S_H,4)}, s{S_T} offen {sc}","hst")
            elif op[0]=="fn": op[1]()
        elif op=="NOP":
            if a.l[-1].startswith("v_rcp"): a("s_nop 0")
        else: a(op)
    for i in range(nslots):
        for op in item_ops(): emit(op)
    phaseA4_setup2(a)
    if pre_hook: pre_hook()
    cur={"W":0,"X":0}
    def win(kind,slot,regs):
        base=slot*SLOT; w=(base//49152)*49152; o=[]
        if w!=cur[kind]:
            d=w-cur[kind]; o=[f"v_add_u32 v{r}, {d&0xffffffff:#x}, v{r}" for r in regs]; cur[kind]=w
        return base-w,o
    def reads(n):
        t,ss=divmod(n,2); p=t//9
        o,ops=win("W",slot_of[("W",t)],[A4_VA+i for i in range(4)]+[A4_VAH,A4_VAH+1])
        if p==3 and t==27 and ss==0 and cur["W"] and not ops: pass
        fb=A4_FR+16*(n%2)
        for f in range(4 if p<4 else 2):
            va=A4_VA+f if p<4 else A4_VAH+f
            for tt in range(2): ops.append(("lds",f"ds_read_b64_tr_b16 {vr(fb+4*f+2*tt,2)}, v{va} offset:{o+ss*4096+tt*512}",("n",n)))
        if p==0:
            o,o2=win("X",slot_of[("X",t)],[A4_VXR,A4_VXR+1]); ops+=o2
            for g in range(4): ops.append(("lds",f"ds_read_b128 {xf(4*n+g)}, v{A4_VXR+ss} offset:{o+g*2048}",("n",n)))
        return ops
    a.wait_vm(("st",0)); a("s_barrier")
    for op in reads(0): emit(op)
    pend=[]; dq=[]; freed=0; mc=[0,-99]
    N=NST*2
    for n in range(N):
        t,ss=divmod(n,2); p,tt=divmod(t,9); kn=n-18*p
        if n==54:
            pass
        a.wait_lg(("n",n))
        BG=OPT.get("bg",1)
        if ss==1 and t+1<NST and (t<9 or (t-8)%BG==0):
            a.wait_vm(("st",min(NST-1,t+(1 if t<8 else BG))))
            if not OPT.get("nobar"): a("s_barrier")
            for q in range(freed,t+1):
                dq+=item_ops()
                if q<9: dq+=item_ops()
            freed=t+1
        rq=reads(n+1) if n+1<N else []
        fb=A4_FR+16*(n%2); acc=A4_ACC[p%2]
        nm=16 if p<4 else 8
        quota=10**6 if kn>=1 else 0
        for m in range(nm):
            f,g=divmod(m,4)
            d=vr(acc+(16*f if p<4 else 32*f)+4*g,4)
            a(f"v_mfma_f32_16x16x32_bf16 {d}, {vr(fb+4*f,4)}, {xf(4*kn+g)}, {d if kn else 0}")
            bud=8; mc[0]+=1
            while bud>0:
                gap=OPT.get("gap",7) if t>9 else OPT.get("gap0",3)
                if rq: op=rq.pop(0)
                elif dq and (not isinstance(dq[0],tuple) or mc[0]-mc[1]>=gap):
                    op=dq.pop(0)
                    if isinstance(op,tuple): mc[1]=mc[0]
                elif pend and quota>0 and cost(pend[0])<=bud and not OPT.get("nosilu"): op=pend.pop(0); quota-=1
                elif side and side() is not None: op=side(True)
                else: break
                emit(op); bud-=cost(op)
        for op in rq: emit(op)
        if kn==17:
            if OPT.get("nosilu"): pend=[]
            while pend: emit(pend.pop(0))
            pend=silu4(acc,p==4,S_FC if p<4 else S_FCH,p*2048 if p<4 else 0)
        if step_hook: step_hook(n)
    for op in dq: emit(op)
    if tail:
        a("s_nop 7")
        for op in pend: emit(op)
    return pend
```

```python
import sys,copy
from parts import *
import parts
NAME="gated_mix__ssm_conv_s4__swiglu_ffn__prompt"
KN=NAME+"_kernel"
hdr=[l for l in open("cdna_kernels/"+NAME+".s.ref").read().split("\n") if l.startswith(";") and "@launch" not in l and "Override" not in l and "grid=ceil" not in l]
S_DBG=84; S_SD,S_LB,S_JOB,S_TMP=80,81,82,83
SYNC=72704+64
RINGB=81920
V_SIG,V_ONE,V_PO,V_PD=28,29,30,31
M_HB=112; M_ACC=[192,208,224,240,80]; M_FR=32
M_VH,M_VW,M_VR,M_VRED=64,69,75,79
M_VO,M_VAR,M_VAD,M_G,M_AT=96,97,98,101,2
MB_H,MB_W,MB_O,MB_A,MB_G=S_H,44,40,68,72
MB_MT,MB_NT,MB_KQ,MB_BH,MB_BW,MB_M0,MB_T,MB_T2=92,93,94,95,96,97,98,99
SPIN=20000
FL_OFF=0x1690000; S_NON=100; S_ROLE=101
class G:
    def __init__(s,**o):
        s.o=dict(bg=2,PD=4,stamps=False,pfd=10,pfw=0,sc="sc1",prio=3,c2=(8,12),c3=(16,20),at=(29,33),arr=4,side=1); s.o.update(o); s.nl=0
    def lab(s,x): s.nl+=1; return f"L{x}{s.nl}"
    def st(s,a,slot,vt=(1,29),clk=False):
        if s.o["stamps"]: stamp(a,slot,sbase=88,vt=vt,clk=clk)
    def signal(s,a,off):
        a(f"v_mov_b32 v{V_ONE}, s{S_NON}"); a.vmem(f"buffer_store_dword v{V_ONE}, v{V_SIG}, {sr(S_DBG,4)}, 0 offen offset:{off} sc1","sig")
    def poll_issue(s,a,off,vo=V_PO,vd=V_PD): a.vmem(f"buffer_load_dword v{vd}, v{vo}, {sr(S_DBG,4)}, 0 offen offset:{off} sc1","poll")
    def poll_check(s,a,off,val=None,vo=V_PO,vd=V_PD,cmp="ne"):
        if val is None: val=f"s{S_NON}"
        ok=s.lab("ok"); lp=s.lab("lp")
        a.wait_vm("poll")
        a(f"""v_cmp_{cmp}_u32 vcc, {val}, v{vd}
        s_nop 1
        s_cbranch_vccz {ok}
        s_mov_b32 s{S_TMP}, {SPIN}
        {lp}:
        buffer_load_dword v{vd}, v{vo}, {sr(S_DBG,4)}, 0 offen offset:{off} sc1
        s_sub_u32 s{S_TMP}, s{S_TMP}, 1
        s_cbranch_scc1 {ok}
        s_waitcnt vmcnt(0)
        v_cmp_{cmp}_u32 vcc, {val}, v{vd}
        s_nop 1
        s_cbranch_vccnz {lp}
        {ok}:""")
    def arrive(s,a,word,last,soff,vt):
        sk=s.lab("sk")
        a(f"s_mov_b64 exec, 1\nv_mov_b32 v{vt}, {SYNC+4*word}\nv_mov_b32 v{vt+1}, 1\nds_add_rtn_u32 v{vt}, v{vt}, v{vt+1}\ns_waitcnt lgkmcnt(0)"); a.lg=[]
        a(f"v_cmp_ne_u32 vcc, {last}, v{vt}\nv_mov_b32 v{vt}, {soff}\nv_mov_b32 v{vt+1}, s{S_NON}\ns_cbranch_vccnz {sk}")
        a(f"buffer_store_dword v{vt+1}, v{vt}, {sr(S_DBG,4)}, 0 offen sc1\n{sk}:\ns_mov_b64 exec, -1")
    def gen(s,out):
        o=s.o; a=A(); sc=o["sc"]; BG=o["bg"]; PD=o["PD"]; NS=PD+1
        END="Lend"
        prologue(a,256,END)
        s.st(a,0,vt=(1,2)); s.st(a,16,vt=(1,2),clk=True)
        phaseA_setup(a)
        NST=45; items=[]
        for t in range(NST):
            if t<9: items.append(("X",t))
            items.append(("W",t))
        slot_of={it:i%10 for i,it in enumerate(items)}
        class St: pass
        S=St(); S.nxt=0; S.cur={"W":0,"X":0}; S.pend=[]; S.freeq=0; S.freed=0; S.side=[]
        def issue_item(a,S):
            if S.nxt>=len(items): return
            it=items[S.nxt]; S.nxt+=1; k,t=it; p,tt=divmod(t,9)
            a(f"s_add_u32 m0, s{S_M0}, {slot_of[it]*SLOT}")
            if k=="X": a(f"s_movk_i32 s{S_T}, {tt*128}"); v0_,v1_,sd=VOX0,VOX1,S_X
            else: a(f"s_add_u32 s{S_T}, s{S_LINE if p<4 else S_LINEH}, {tt*64*9216+(p*128 if p<4 else 0)}"); v0_,v1_,sd=VOW0,VOW1,S_W
            a.vmem(f"buffer_load_dwordx4 v{v0_}, {sr(sd,4)}, s{S_T} offen lds",("st",t))
            a.vmem(f"buffer_load_dwordx4 v{v1_}, {sr(sd,4)}, s{S_T} offen offset:1024 lds",("st",t))
        issue_item(a,S); issue_item(a,S)
        srd(a,S_DBG,P_DBG,256)
        a(f"""s_or_b32 s60, s2, s{SW}
        s_cmp_lg_u32 s60, 0
        s_cbranch_scc1 Lnonon
        s_memrealtime s[60:61]
        v_mov_b32 v20, 0
        s_waitcnt lgkmcnt(0)
        s_or_b32 s60, s60, 1
        v_mov_b32 v21, s60
        s_mov_b64 exec, 1
        buffer_store_dword v21, v20, {sr(S_DBG,4)}, 0 offen sc1
        s_mov_b64 exec, -1
        Lnonon:""")
        gv=48
        srd(a,68,P_GW,1152)
        a(f"s_lshl_b32 s70, s{S_MI}, 7\ns_mov_b32 s70, 1152\ns_lshl_b32 s72, s{S_MI}, 7\ns_lshl_b32 s73, s{S_FJ}, 3\ns_add_u32 s72, s72, s73\ns_add_u32 s72, s72, s{SW}\ns_mul_i32 s73, s72, 1152")
        a(f"v_lshlrev_b32 v{gv}, 4, v0\nv_add_u32 v{gv+1}, 1024, v{gv}\nv_cmp_gt_u32 vcc, 8, v0\nv_mov_b32 v{gv+2}, {BIG:#x}\ns_nop 0\nv_cndmask_b32 v{gv+1}, v{gv+2}, v{gv+1}, vcc")
        a.vmem(f"buffer_load_dwordx4 {vr(gv+2,4)}, v{gv}, {sr(S_X,4)}, s73 offen","g")
        a.vmem(f"buffer_load_dwordx4 {vr(gv+6,4)}, v{gv+1}, {sr(S_X,4)}, s73 offen","g")
        a.vmem(f"buffer_load_dwordx4 {vr(gv+10,4)}, v{gv}, {sr(68,4)}, 0 offen","g")
        a.vmem(f"buffer_load_dwordx4 {vr(gv+14,4)}, v{gv+1}, {sr(68,4)}, 0 offen","g")
        for i in range(8): issue_item(a,S)
        def touch(a,ptr,vt=70):
            srd(a,76,ptr,4608*1152)
            a(f"""s_lshl_b32 s74, s2, 3
            s_add_u32 s74, s74, s{SW}
            s_mul_i32 s74, s74, {21*128}
            v_lshlrev_b32 v1, 7, v0
            v_cmp_gt_u32 vcc, 21, v0
            v_mov_b32 v{V_PD}, {BIG:#x}
            s_nop 0
            v_cndmask_b32 v1, v{V_PD}, v1, vcc""")
            a.vmem(f"buffer_load_dword v{V_ONE}, v1, {sr(76,4)}, s74 offen","pf")
        if o["pfw"]==0: touch(a,P_WG); touch(a,P_WU)
        phaseA_setup2(a)
        a(f"""s_and_b32 s60, s2, 7
        s_lshr_b32 s61, s2, 3
        s_mul_i32 s62, s60, 30
        s_add_u32 s62, s62, s61
        s_cmp_lt_u32 s62, 234
        s_cselect_b32 s{S_ROLE}, 1, 0
        s_cmp_lt_u32 s61, 30
        s_cselect_b32 s{S_ROLE}, s{S_ROLE}, 0
        s_cmp_lt_u32 s{SW}, 4
        s_cselect_b32 s{S_ROLE}, s{S_ROLE}, 0
        s_mul_hi_u32 s{MB_MT}, s62, {(2**32+8)//9:#x}
        s_mul_i32 s63, s{MB_MT}, 9
        s_sub_u32 s{MB_NT}, s62, s63
        s_sub_u32 s61, s61, 14
        s_cselect_b32 s{S_JOB}, 0, 1
        s_cselect_b32 s61, 0, s61
        s_cmp_lt_u32 s{SW}, 4
        s_cselect_b32 s{S_JOB}, 0, s{S_JOB}
        s_lshl_b32 s61, s61, 3
        s_add_u32 s61, s61, s60
        s_lshl_b32 s61, s61, 2
        s_and_b32 s62, s{SW}, 3
        s_add_u32 s{S_SD}, s61, s62
        s_mul_i32 s{S_LB}, s62, {SSM_LDS}
        s_mul_i32 s60, s{MB_MT}, 80
        s_add_u32 s61, s60, 79
        s_lshr_b32 s60, s60, 7
        s_lshr_b32 s61, s61, 7
        s_min_u32 s60, s60, 15
        s_min_u32 s61, s61, 15
        s_lshl_b32 s60, s60, 7
        s_lshl_b32 s61, s61, 7
        v_and_b32 v12, 15, v0
        v_and_b32 v13, 16, v0
        v_cmp_eq_u32 vcc, 0, v13
        v_mov_b32 v13, s60
        v_mov_b32 v14, s61
        v_cndmask_b32 v13, v14, v13, vcc
        v_lshl_add_u32 v13, v12, 2, v13
        s_lshr_b32 s60, s{S_SD}, 6
        s_lshl_b32 s60, s60, 2
        v_lshl_add_u32 v14, v12, 7, s60
        s_cmp_eq_u32 s{S_ROLE}, 1
        s_cselect_b64 vcc, -1, 0
        v_cndmask_b32 v{V_PO}, v14, v13, vcc
        s_lshl_b32 s60, s{S_MI}, 7
        s_lshl_b32 s61, s{S_FJ}, 2
        s_add_u32 s{S_MI}, s60, s61
        s_cmp_eq_u32 s{SW}, 0
        s_cselect_b32 s60, s{S_MI}, {BIG:#x}
        v_mov_b32 v{V_SIG}, {BIG:#x}
        v_mov_b32 v1, s60
        v_cmp_eq_u32 vcc, 0, v0
        s_lshr_b32 s{S_MI}, s{S_MI}, 7
        s_nop 0
        v_cndmask_b32 v{V_SIG}, v{V_SIG}, v1, vcc""")
        a(f"""v_bfe_u32 v12, v0, 2, 2
        v_and_b32 v13, 3, v0
        v_lshrrev_b32 v14, 4, v0
        v_lshl_add_u32 v15, v14, 2, v13
        v_lshl_add_u32 v15, v15, 3, v12
        v_lshrrev_b32 v16, 1, v12
        v_and_b32 v17, 1, v13
        v_lshl_or_b32 v16, v17, 2, v16
        v_xor_b32 v16, s{SW}, v16
        v_lshlrev_b32 v16, 4, v16
        v_lshl_add_u32 v10, v15, 7, v16
        s_lshl_b32 s60, s{S_FJ}, 1
        s_sub_u32 s61, s60, 10
        s_cmp_ge_u32 s60, 10
        s_cselect_b32 s60, s61, s60
        s_lshl_b32 s60, s60, 14
        v_add_u32 v10, s60, v10
        v_xor_b32 v11, 32, v10
        v_lshl_add_u32 v14, v14, 2, v12
        v_lshlrev_b32 v14, 4, v14
        v_lshl_add_u32 v{V_PD}, v13, 12, v14
        s_lshl_b32 s74, s{S_FJ}, 18
        s_lshl_b32 s60, s{SW}, 15
        s_add_u32 s74, s74, s60
        s_lshl_b32 s60, s{S_MI}, 8
        s_add_u32 s74, s74, s60
        s_add_u32 s75, s74, 0x4000""")
        v=gv; a.wait_vm("g"); srd(a,68,P_WS,8192,G_OFF)
        a(f"v_mov_b32 v{v}, 0")
        for i in range(8): a(f"v_dot2c_f32_bf16 v{v}, v{v+2+i}, v{v+10+i}")
        a("s_nop 2")
        for m in ["row_shr:1 row_mask:0xf","row_shr:2 row_mask:0xf","row_shr:4 row_mask:0xf","row_shr:8 row_mask:0xf","row_bcast:15 row_mask:0xa","row_bcast:31 row_mask:0xc"]:
            a(f"v_add_f32_dpp v{v}, v{v}, v{v} {m} bank_mask:0xf\ns_nop 1")
        a(f"v_mul_f32 v{v}, {f2u(-LOG2E):#x}, v{v}\nv_exp_f32 v{v}, v{v}\ns_nop 0\nv_add_f32 v{v}, 1.0, v{v}\nv_rcp_f32 v{v}, v{v}")
        a(f"s_lshl_b32 s73, s72, 2\nv_mov_b32 v{v+1}, {BIG:#x}\nv_cmp_eq_u32 vcc, 63, v0\ns_nop 1\nv_cndmask_b32 v{v+1}, v{v+1}, 0, vcc")
        a.vmem(f"buffer_store_dword v{v}, v{v+1}, {sr(68,4)}, s73 offen {sc}","gst")
        srd(a,68,P_WS,T_SZ,XT_OFF)
        def win(a,S,kind,slot,regs):
            base=slot*SLOT; w=(base//49152)*49152
            if w!=S.cur[kind]:
                d=w-S.cur[kind]
                for r in regs: a(f"v_add_u32 v{r}, {d&0xffffffff:#x}, v{r}")
                S.cur[kind]=w
            return base-w
        def reads(a,S,n):
            t,st=divmod(n,4); p=t//9
            of=win(a,S,"W",slot_of[("W",t)],[VA0,VA1,VAH]); fb=FR+8*(n%2)
            for cc in range(2 if p<4 else 1):
                va=[VA0,VA1][cc] if p<4 else VAH
                for tt in range(2): a.lds(f"ds_read_b64_tr_b16 {vr(fb+4*cc+2*tt,2)}, v{va} offset:{of+(16*st+4*tt)*128}",("n",n))
            if p==0:
                of=win(a,S,"X",slot_of[("X",t)],[VXR,VXR+1,VXR+2,VXR+3])
                a.lds(f"ds_read_b128 {vr(XF+4*n,4)}, v{VXR+st} offset:{of}",("n",n))
        def drain(a,S,k):
            for _ in range(k):
                if not S.pend: return
                op=S.pend.pop(0)
                if isinstance(op,tuple):
                    _,so,vp,p=op; a(so)
                    a.vmem(f"buffer_store_dwordx4 {vr(vp,4)}, v{VOH}, {sr(S_H,4)}, s{S_T} offen {sc}",("hst",p))
                else: a(op)
        bars=[t for t in range(NST-1) if t<9 or (t-8)%BG==0]
        tC1=min(t for t in bars if t>=28); tC2=min(t for t in bars if t>=37); tF=min(t for t in bars if t>=40); tZ=min(t for t in bars if t>=36)
        def step(a,S,n,side=0,post_bar=None):
            t,st=divmod(n,4); p,tt=divmod(t,9); kn=n-36*p
            if p==0 and st==0:
                sk=s.lab("xt")
                a(f"s_cmp_lg_u32 s{S_FJ}, {t}\ns_cbranch_scc1 {sk}")
                for u in range(2): a(f"ds_read_b64_tr_b16 {vr(12+4*u,2)}, v10 offset:{8*u}\nds_read_b64_tr_b16 {vr(14+4*u,2)}, v11 offset:{8*u+512}")
                a(f"s_waitcnt lgkmcnt(0)\nbuffer_store_dwordx4 v[12:15], v{V_PD}, s[68:71], s74 offen {sc}\nbuffer_store_dwordx4 v[16:19], v{V_PD}, s[68:71], s75 offen {sc}\n{sk}:")
            last=(n==NST*4-1)
            if st==3 and t in bars:
                a.wait_lg(("n",n))
                a.wait_vm(("st",min(NST-1,t+(1 if t<8 else BG))))
                if t==tC1: a.wait_vm(("hst",1))
                if t==tC2: a.wait_vm(("hst",2))
                a("s_barrier")
                S.freeq+=sum(2 if q<9 else 1 for q in range(S.freed,t+1)); S.freed=t+1
                if t==tC1: s.signal(a,0)
                if t==tC2: s.signal(a,2048); s.poll_issue(a,0)
                if t==tZ: a(f"v_mov_b32 v1, {SYNC}\nv_mov_b32 v10, 0\nv_mov_b32 v11, 0"); a.lds("ds_write_b64 v1, v[10:11]","z")
                if post_bar and t==tF: return post_bar()
            step2(a,S,n,side)
        def step2(a,S,n,side):
            t,st=divmod(n,4); p,tt=divmod(t,9); kn=n-36*p; last=(n==NST*4-1)
            free=min(S.freeq,2 if t<10 else 1); S.freeq-=free
            if not last: reads(a,S,n+1)
            a.wait_lg(("n",n))
            if last: a("s_barrier")
            fb=FR+8*(n%2); acc=ACC[p%2]
            for cc in range(2 if p<4 else 1):
                d=vr(acc+16*cc,16)
                a(f"v_mfma_f32_32x32x16_bf16 {d}, {vr(fb+4*cc,4)}, {vr(XF+4*kn,4)}, {d if kn else 0}")
                if cc==0:
                    for _ in range(free): issue_item(a,S)
                if kn>=3: drain(a,S,2 if p<4 else 4)
            for _ in range(side):
                if S.side: S.side.pop(0)(kn)
            if n==4*11: a("v_mov_b32 v10, 0"); s.poll_issue(a,0,vo=10)
            if n==4*20:
                s.poll_check(a,0,0,vo=10,cmp="eq"); a(f"v_readfirstlane_b32 s{S_NON}, v{V_PD}"); srd(a,S_DBG,P_WS,8192,FL_OFF)
            if o["pfd"] is not None and n==4*o["pfd"]: touch(a,P_WD)
            if o["pfw"] and n==4*o["pfw"]: touch(a,P_WG); touch(a,P_WU)
            if kn==35:
                assert not S.pend
                so=[f"s_add_u32 s{S_T}, s{S_FC}, {p*2048+cc*512}" for cc in range(2)] if p<4 else [f"s_mov_b32 s{S_T}, s{S_FCH}"]
                S.pend=[x+(p,) if isinstance(x,tuple) else x for x in silu_ops(acc,2 if p<4 else 1,so,sc)]
                s.st(a,6+p)
        a.wait_vm(("st",0)); a("s_barrier")
        s.st(a,11)
        reads(a,S,0)
        nF=4*tF+3
        for n in range(nF): step(a,S,n)
        step(a,S,nF,post_bar=lambda:None)
        assert S.nxt==len(items)
        a(f"s_cmp_eq_u32 s{S_ROLE}, 0\ns_cbranch_scc1 Lsrole")
        a2=A(); a2.vm=list(a.vm); a2.lg=list(a.lg); S2=copy.deepcopy(S)
        s.poll_check(a,0)
        C=b_chunks(); N=36
        def issue_w(n,i):
            if n>=N: return
            if i==0: a(f"s_add_u32 m0, s{MB_M0}, {(n%NS)*4096}\ns_add_u32 s{MB_T2}, s{MB_BW}, {C[n]*36864}")
            a.vmem(f"buffer_load_dwordx4 v{M_VW+i}, {sr(MB_W,4)}, s{MB_T2} offen offset:{1024*i} lds",("W",n))
        def issue_h(n,j,kn=99):
            if n>=N: return
            assert M_HB+20*(n%PD)+4*j+3 < XF+4*kn, (n,j,kn)
            if j==0: a(f"s_add_u32 s{MB_T}, s{MB_BH}, {C[n]*1024}")
            a.vmem(f"buffer_load_dwordx4 {vr(M_HB+20*(n%PD)+4*j,4)}, v{M_VH+j}, {sr(MB_H,4)}, s{MB_T} offen {sc}",("h",n))
        a(f"s_mov_b32 s{MB_KQ}, s{SW}"); srd(a,MB_W,P_WD,4608*1152)
        a(f"""s_mul_i32 s{MB_BH}, s{MB_KQ}, {36*1024}
        s_mul_i32 s{MB_BW}, s{MB_KQ}, {36*36864}
        s_mul_i32 s{MB_M0}, s{MB_KQ}, {NS*4096}
        s_add_u32 s{MB_M0}, s{MB_M0}, {RINGB}
        v_lshrrev_b32 v31, 3, v0
        v_bfe_u32 v1, v0, 1, 2
        v_bfe_u32 v{M_VW+1}, v0, 4, 2
        v_xor_b32 v1, v1, v{M_VW+1}
        v_and_b32 v{M_VW+1}, 1, v0
        v_lshlrev_b32 v{M_VW+1}, 4, v{M_VW+1}
        v_lshl_add_u32 v1, v1, 5, v{M_VW+1}
        v_mul_u32_u24 v31, 1152, v31
        s_lshl_b32 s60, s{MB_NT}, 7
        v_add3_u32 v{M_VW}, v1, v31, s60""")
        for i in range(1,4): a(f"v_add_u32 v{M_VW+i}, {8192*i}, v{M_VW}")
        def sh(kn):
            a(f"s_mul_i32 s60, s{MB_MT}, {5*147456}\nv_lshl_add_u32 v{M_VH}, v0, 4, s60")
            for j in range(1,5): a(f"v_add_u32 v{M_VH+j}, {147456*j}, v{M_VH}")
        S.side=[(lambda kn,i=i:issue_w(0,i)) for i in range(4)]+[sh]
        for n in range(PD):
            S.side+=[(lambda kn,n=n,j=j:issue_h(n,j,kn)) for j in range(5)]+[(lambda kn,n=n,i=i:issue_w(n+1,i)) for i in range(4)]
        step2(a,S,nF,o["side"])
        for n in range(nF+1,NST*4): step(a,S,n,side=o["side"])
        a(f"""v_bfe_u32 v1, v0, 2, 3
        v_lshrrev_b32 v31, 5, v0
        v_lshl_add_u32 v31, v31, 4, v1
        v_lshrrev_b32 v1, 1, v1
        v_lshlrev_b32 v1, 5, v1
        v_lshl_add_u32 v1, v31, 7, v1
        v_and_b32 v31, 3, v0
        v_lshl_add_u32 v1, v31, 3, v1
        v_add_u32 v{M_VR}, s{MB_M0}, v1""")
        for d in range(1,4): a(f"v_xor_b32 v{M_VR+d}, {32*d}, v{M_VR}")
        a("s_nop 3")
        while S.pend or S.side:
            drain(a,S,3)
            if S.side: S.side.pop(0)(99)
        s.st(a,1); s.st(a,17,clk=True); s.st(a,4); s.st(a,18,clk=True)
        def breads(n):
            for d in range(4):
                for t in range(2): a.lds(f"ds_read_b64_tr_b16 {vr(M_FR+16*(n%2)+4*d+2*t,2)}, v{M_VR+d} offset:{(n%NS)*4096+1024*t}",("f",n))
        a.wait_vm(("W",0)); breads(0)
        srd(a,MB_O,P_OUT,2048*1152); srd(a,MB_A,P_WS,T_SZ,AT_OFF); srd(a,MB_G,P_WS,8192,G_OFF)
        aslot=(N-NS)%NS
        def setup3():
            a(f"""s_lshl_b32 s60, s{MB_NT}, 6
            s_lshl_b32 s61, s{MB_KQ}, 4
            s_add_u32 s60, s60, s61
            s_lshl_b32 s61, s60, 12
            s_mul_i32 s62, s{MB_MT}, 160
            s_add_u32 s61, s61, s62""")
            for i in range(3):
                a(f"""v_add_u32 v1, {64*i}, v0
                v_mul_u32_u24 v12, 6554, v1
                v_lshrrev_b32 v12, 16, v12
                v_mul_u32_u24 v{M_VAD+i}, {4096-160}, v12
                v_lshl_add_u32 v{M_VAD+i}, v1, 4, v{M_VAD+i}
                v_add_u32 v{M_VAD+i}, s61, v{M_VAD+i}""")
            a(f"v_cmp_gt_u32 vcc, 32, v0\nv_mov_b32 v1, {BIG:#x}\ns_nop 0\nv_cndmask_b32 v{M_VAD+2}, v1, v{M_VAD+2}, vcc")
            a(f"""v_lshrrev_b32 v1, 2, v0
            v_mul_u32_u24 v1, 160, v1
            v_and_b32 v12, 3, v0
            v_lshl_add_u32 v1, v12, 3, v1
            v_add_u32 v{M_VAR}, s{MB_M0}, v1
            s_mul_i32 s62, s{MB_MT}, 80
            v_and_b32 v1, 15, v0
            v_add_u32 v1, s62, v1
            v_lshlrev_b32 v{M_G}, 2, v1
            v_mul_u32_u24 v1, 1152, v1
            v_lshrrev_b32 v12, 4, v0
            v_lshl_add_u32 v1, v12, 3, v1
            s_lshl_b32 s60, s60, 1
            v_add_u32 v{M_VO}, s60, v1
            v_lshl_add_u32 v{M_VRED}, v0, 4, s{MB_M0}
            s_lshl_b32 s60, s{MB_NT}, 7
            s_add_u32 s60, s60, {3*2048}
            v_and_b32 v13, 15, v0
            v_lshl_add_u32 v13, v13, 2, s60
            v_add_u32 v{V_SIG}, 2048, v{V_PO}""")
        ATR=M_HB+20*((N-PD)%PD)
        for n in range(N):
            a.wait_vm(("h",n)); a.wait_vm(("W",n+1))
            if n==o["arr"]:
                a.wait_vm(("hst",4)); a(f"s_lshl_b32 s60, s{S_MI}, 7\ns_lshl_b32 s61, s{S_FJ}, 2\ns_add_u32 s60, s60, s61\ns_add_u32 s60, s60, 4096"); s.arrive(a,0,7,"s60",14)
            if n==o["c2"][1]: s.poll_check(a,2048)
            if n==o["c3"][1]: s.poll_check(a,2048,vo=V_SIG)
            if n==o["at"][1]:
                s.st(a,12)
                s.poll_check(a,0,vo=13)
                if not o.get('sst'): s.st(a,13)
                for i in range(3): a.vmem(f"buffer_load_dwordx4 {vr(ATR+4*i,4)}, v{M_VAD+i}, {sr(MB_A,4)}, 0 offen {sc}","at")
                for j in range(4,-1,-1): a.vmem(f"buffer_load_dword v{M_G+j}, v{M_G}, {sr(MB_G,4)}, 0 offen offset:{64*j} {sc}","at")
            a.wait_lg(("f",n))
            if n+1<N: breads(n+1)
            if n==o["c2"][0]: s.poll_issue(a,2048)
            if n==o["c3"][0]: s.poll_issue(a,2048,vo=V_SIG)
            if n==o["at"][0]: s.poll_issue(a,0,vo=13)
            for j in range(5):
                for d in range(4):
                    acc=vr(M_ACC[j]+4*d,4)
                    a(f"v_mfma_f32_16x16x32_bf16 {acc}, {vr(M_FR+16*(n%2)+4*d,4)}, {vr(M_HB+20*(n%PD)+4*j,4)}, {acc if n else 0}")
                    if j<4 and d==0: issue_w(n+NS,j)
                issue_h(n+PD,j)
            if n==1: setup3()
        assert o["at"][1]>N-PD
        a.wait_vm("at")
        for i in range(3): a(f"ds_write_b128 v{M_VRED}, {vr(ATR+4*i,4)} offset:{aslot*4096+1024*i}")
        a("s_waitcnt lgkmcnt(0)")
        for j in range(5): a(f"ds_read_b64_tr_b16 {vr(M_AT+2*j,2)}, v{M_VAR} offset:{aslot*4096+32*j}")
        a("s_waitcnt lgkmcnt(0)"); a.lg=[]
        for k in range(4):
            lb=s.lab("w")
            a(f"s_cmp_lg_u32 s{MB_KQ}, {k}\ns_cbranch_scc1 {lb}")
            for d in range(4):
                if d==k: continue
                for j in range(5): a(f"ds_write_b128 v{M_VRED}, {vr(M_ACC[j]+4*d,4)} offset:{(d*5+j)*1024}")
            for j in range(5):
                for i in range(4):
                    if k: a(f"v_mov_b32 v{M_ACC[j]+i}, v{M_ACC[j]+4*k+i}")
            a(f"{lb}:")
        a(f"s_mul_i32 s60, s{MB_KQ}, 5120\ns_add_u32 s60, s60, {RINGB}\nv_lshl_add_u32 v1, v0, 4, s60\ns_waitcnt lgkmcnt(0)\ns_barrier")
        for q in range(1,4):
            a(f"s_add_u32 s60, s{MB_KQ}, {q}\ns_and_b32 s60, s60, 3\ns_mul_i32 s60, s60, {NS*4096}\nv_add_u32 v12, s60, v1")
            for j in range(5): a.lds(f"ds_read_b128 {vr(M_HB+20*(q-1)+4*j,4)}, v12 offset:{j*1024}",("r",q))
        for q in range(1,4):
            a.wait_lg(("r",q))
            for j in range(5):
                for i in range(0,4,2): a(f"v_pk_add_f32 {vr(M_ACC[j]+i,2)}, {vr(M_ACC[j]+i,2)}, {vr(M_HB+20*(q-1)+4*j+i,2)}")
        for j in range(5):
            b=M_ACC[j]; t=b+4; u=M_AT+2*j
            a(f"v_lshlrev_b32 v{t}, 16, v{u}\nv_and_b32 v{t+1}, 0xffff0000, v{u}\nv_lshlrev_b32 v{t+2}, 16, v{u+1}\nv_and_b32 v{t+3}, 0xffff0000, v{u+1}")
            for i in range(4): a(f"v_sub_f32 v{t+i}, v{t+i}, v{b+i}")
            for i in range(4): a(f"v_fmac_f32 v{b+i}, v{M_G+j}, v{t+i}")
            a(f"v_cvt_pk_bf16_f32 v{b}, v{b}, v{b+1}\nv_cvt_pk_bf16_f32 v{b+1}, v{b+2}, v{b+3}\ns_mov_b32 s60, {16*1152*j}")
            a.vmem(f"buffer_store_dwordx2 {vr(b,2)}, v{M_VO}, {sr(MB_O,4)}, s60 offen","o")
        s.st(a,5); s.st(a,19,clk=True)
        a("s_endpgm")
        b=a2; b("Lsrole:")
        s.poll_check(b,0)
        ssm_params(b,S_SD,64)
        step2(b,S2,nF,0)
        for n in range(nF+1,NST*4): step(b,S2,n)
        b("s_nop 15"); drain(b,S2,1000)
        b("s_waitcnt vmcnt(0)"); b.vm=[]
        b(f"s_lshl_b32 s60, s{S_MI}, 7\ns_lshl_b32 s61, s{S_FJ}, 2\ns_add_u32 s60, s60, s61\ns_add_u32 s60, s60, 4096"); s.arrive(b,0,7,"s60",14)
        b(f"s_cmp_eq_u32 s{S_JOB}, 0\ns_cbranch_scc1 {END}")
        if o["prio"]: b(f"s_setprio {o['prio']}")
        s.st(b,2)
        for i in range(8): b(f"v_mov_b32 v{2+i}, v{64+i}")
        parts.OPT['pk']=o.get('pk'); ssm_wave(b,S_SD,S_LB,sc_ld=sc,sc_st=sc,params=False,st=(lambda k:s.st(b,(14,15,13)[k],vt=(250,251))) if o.get('sst') else None)
        b("s_waitcnt vmcnt(0)")
        b(f"s_lshr_b32 s60, s{S_SD}, 6\ns_lshl_b32 s60, s60, 7\ns_bfe_u32 s61, s{S_SD}, 0x40002\ns_lshl_b32 s61, s61, 2\ns_add_u32 s60, s60, s61\ns_add_u32 s60, s60, {3*2048}"); s.arrive(b,1,3,"s60",14)
        s.st(b,3)
        txt="\n".join(hdr+["; @launch grid=(256,1,1) block=(512,1,1) lds=163840"])+'\n.amdgcn_target "amdgcn-amd-amdhsa--gfx950"\n.text\n'+kernel_head(KN)+a.text()+b.text()+f"{END}:\ns_endpgm\n"+'.section .rodata,"a"\n'+kernel_desc(KN,256)
        open(out,"w").write(txt)
if __name__=="__main__":
    G().gen("m.s"); G(stamps=True).gen("ms.s")
    V=eval(sys.argv[1]) if len(sys.argv)>1 else []
    for nm,o in zip("abcdefgh",V):
        G(stamps=True,**o).gen(f"x_{nm}.s"); G(**o).gen(f"y_{nm}.s")
```

```python
from asmlib import *
import math
H_OFF=0; H_SZ=2048*4608*2
XT_OFF=0x1200000; AT_OFF=0x1440000; T_SZ=0x240000
G_OFF=0x1680000; TS_OFF=0x1700000
LOG2E=1.4426950408889634
BIG=0x40000000
P_X,P_ARE,P_AIM,P_BRE,P_BIM,P_CRE,P_CIM,P_LDT=4,6,8,10,12,14,16,18
P_DSK,P_BX,P_WG,P_WU,P_WD,P_GW,P_OUT,P_DBG,P_WS=20,22,24,26,28,30,32,34,36
SW=38
def prologue(a,nwg,endlabel):
    a(f"s_cmp_ge_u32 s2, {nwg}\ns_cbranch_scc1 {endlabel}")
    a("s_load_dwordx16 s[4:19], s[0:1], 0\ns_load_dwordx16 s[20:35], s[0:1], 64\ns_load_dwordx2 s[36:37], s[0:1], 128")
    a(f"v_lshrrev_b32 v1, 6, v0\nv_and_b32 v0, 63, v0\ns_nop 0\nv_readfirstlane_b32 s{SW}, v1")
    a("s_waitcnt lgkmcnt(0)")
def stamp(a,slot,sbase=90,vt=(1,2),clk=False):
    a(f"{'s_memtime' if clk else 's_memrealtime'} s[{sbase}:{sbase+1}]\ns_lshl_b32 s{sbase+2}, s2, 7\ns_lshl_b32 s{sbase+3}, s{SW}, 15\ns_add_u32 s{sbase+2}, s{sbase+2}, s{sbase+3}")
    a(f"s_add_u32 s{sbase+2}, s{sbase+2}, {TS_OFF+slot*4:#x}\ns_waitcnt lgkmcnt(0)"); a.lg=[]
    a(f"v_mov_b32 v{vt[0]}, s{sbase+2}\nv_mov_b32 v{vt[1]}, s{sbase}")
    a.vmem(f"global_store_dword v{vt[0]}, v{vt[1]}, s[{P_WS}:{P_WS+1}]","stamp")

def prep_g_issue(a,sX,sGW,v):
    a(f"s_lshl_b32 s60, s2, 3\ns_add_u32 s60, s60, s{SW}\ns_mul_i32 s61, s60, 1152")
    a(f"v_lshlrev_b32 v{v}, 4, v0\nv_add_u32 v{v+1}, 1024, v{v}\nv_cmp_gt_u32 vcc, 8, v0\nv_mov_b32 v{v+2}, {BIG:#x}\ns_nop 0\nv_cndmask_b32 v{v+1}, v{v+2}, v{v+1}, vcc")
    a.vmem(f"buffer_load_dwordx4 {vr(v+2,4)}, v{v}, {sr(sX,4)}, s61 offen","g")
    a.vmem(f"buffer_load_dwordx4 {vr(v+6,4)}, v{v+1}, {sr(sX,4)}, s61 offen","g")
    a.vmem(f"buffer_load_dwordx4 {vr(v+10,4)}, v{v}, {sr(sGW,4)}, 0 offen","g")
    a.vmem(f"buffer_load_dwordx4 {vr(v+14,4)}, v{v+1}, {sr(sGW,4)}, 0 offen","g")
def prep_g_finish(a,sG,v,sc=""):
    a.wait_vm("g")
    a(f"v_mov_b32 v{v}, 0")
    for i in range(8): a(f"v_dot2c_f32_bf16 v{v}, v{v+2+i}, v{v+10+i}")
    a("s_nop 2")
    for m in ["row_shr:1 row_mask:0xf","row_shr:2 row_mask:0xf","row_shr:4 row_mask:0xf","row_shr:8 row_mask:0xf","row_bcast:15 row_mask:0xa","row_bcast:31 row_mask:0xc"]:
        a(f"v_add_f32_dpp v{v}, v{v}, v{v} {m} bank_mask:0xf\ns_nop 1")
    a(f"v_mul_f32 v{v}, {f2u(-LOG2E):#x}, v{v}\nv_exp_f32 v{v}, v{v}\ns_nop 0\nv_add_f32 v{v}, 1.0, v{v}\nv_rcp_f32 v{v}, v{v}")
    a(f"s_lshl_b32 s61, s60, 2\nv_mov_b32 v{v+1}, {BIG:#x}\nv_cmp_eq_u32 vcc, 63, v0\ns_nop 1\nv_cndmask_b32 v{v+1}, v{v+1}, 0, vcc")
    a.vmem(f"buffer_store_dword v{v}, v{v+1}, {sr(sG,4)}, s61 offen {sc}","gst")
def prep_xt_issue(a,sX,v,ldsbase):
    a(f"s_mul_hi_u32 s62, s2, {(2**32+8)//9:#x}\ns_mul_i32 s63, s62, 9\ns_sub_u32 s63, s2, s63")
    a(f"s_mul_i32 s64, s62, {128*1152}\ns_lshl_b32 s65, s63, 7\ns_add_u32 s64, s64, s65\ns_mul_i32 s65, s{SW}, {16*1152}\ns_add_u32 s64, s64, s65")
    a(f"v_lshrrev_b32 v{v}, 3, v0\nv_and_b32 v{v+1}, 7, v0\nv_bfe_u32 v{v+2}, v0, 4, 1\nv_xor_b32 v{v+1}, v{v+1}, v{v+2}")
    a(f"s_lshl_b32 s65, s{SW}, 2\ns_and_b32 s65, s65, 4")
    a(f"v_xor_b32 v{v+1}, s65, v{v+1}\nv_xor_b32 v{v+2}, 2, v{v+1}")
    a(f"v_mul_u32_u24 v{v}, 1152, v{v}\nv_lshl_add_u32 v{v+1}, v{v+1}, 4, v{v}\nv_lshl_add_u32 v{v+2}, v{v+2}, 4, v{v}\nv_add_u32 v{v+2}, {8*1152-1024}, v{v+2}")
    a(f"s_lshl_b32 s65, s{SW}, 11\ns_add_u32 m0, s65, {ldsbase}\ns_nop 0")
    a.vmem(f"buffer_load_dwordx4 v{v+1}, {sr(sX,4)}, s64 offen lds","xt")
    a.vmem(f"buffer_load_dwordx4 v{v+2}, {sr(sX,4)}, s64 offen offset:1024 lds","xt")
def prep_xt_finish(a,sXT,v,ldsbase,sc=""):
    a(f"v_bfe_u32 v{v}, v0, 2, 2\nv_and_b32 v{v+1}, 3, v0\nv_lshrrev_b32 v{v+2}, 4, v0")
    a(f"v_lshl_add_u32 v{v+3}, v{v+2}, 2, v{v+1}")
    a(f"v_lshl_add_u32 v{v+3}, v{v+3}, 3, v{v}")
    a(f"v_lshrrev_b32 v{v+4}, 1, v{v}\nv_lshl_or_b32 v{v+4}, v{v+1}, 1, v{v+4}\nv_xor_b32 v{v+4}, s{SW}, v{v+4}")
    a(f"v_lshlrev_b32 v{v+4}, 4, v{v+4}\nv_lshl_add_u32 v{v+3}, v{v+3}, 7, v{v+4}")
    for u in range(2):
        a.lds(f"ds_read_b64_tr_b16 {vr(v+4+4*u,2)}, v{v+3} offset:{ldsbase+8*u}","xt")
        a.lds(f"ds_read_b64_tr_b16 {vr(v+6+4*u,2)}, v{v+3} offset:{ldsbase+8*u+512}","xt")
    a(f"v_lshl_add_u32 v{v+2}, v{v+2}, 2, v{v}\nv_lshlrev_b32 v{v+2}, 4, v{v+2}\nv_lshl_add_u32 v{v+2}, v{v+1}, 12, v{v+2}")
    a(f"s_lshl_b32 s64, s63, 18\ns_lshl_b32 s65, s{SW}, 15\ns_add_u32 s64, s64, s65\ns_lshl_b32 s65, s62, 8\ns_add_u32 s64, s64, s65\ns_add_u32 s65, s64, 0x4000")
    a.wait_lg("xt")
    a.vmem(f"buffer_store_dwordx4 {vr(v+4,4)}, v{v+2}, {sr(sXT,4)}, s64 offen {sc}","xtst")
    a.vmem(f"buffer_store_dwordx4 {vr(v+8,4)}, v{v+2}, {sr(sXT,4)}, s65 offen {sc}","xtst")

XF=112; ACC=[48,80]; FR=32
VA0,VA1,VOW0,VOW1,VOX0,VOX1,VOH,VAH=2,3,4,5,6,7,8,9
VXR=80
VT=12
VP=20
S_X,S_W,S_H=40,44,48
S_MI,S_FJ,S_MW,S_FH,S_LINE,S_LINEH,S_M0,S_T,S_FC,S_FCH=52,53,54,55,56,57,58,59,66,67
SLOT=16384
OPT={}
def phaseA_setup(a):
    a(f"""s_and_b32 s60, s2, 7
    s_lshr_b32 s61, s2, 3
    s_and_b32 s62, s60, 1
    s_lshl_b32 s62, s62, 3
    s_and_b32 s63, s61, 7
    s_add_u32 s{S_MI}, s62, s63
    s_lshr_b32 s62, s60, 1
    s_lshl_b32 s62, s62, 2
    s_lshr_b32 s63, s61, 3
    s_add_u32 s{S_FJ}, s62, s63
    s_and_b32 s{S_MW}, s{SW}, 3
    s_lshr_b32 s{S_FH}, s{SW}, 2""")
    srd(a,S_X,P_X,2048*1152)
    a(f"s_cmp_eq_u32 s{S_FH}, 0\ns_cselect_b32 s{S_W}, s{P_WG}, s{P_WU}\ns_cselect_b32 s{S_W+1}, s{P_WG+1}, s{P_WU+1}\ns_mov_b32 s{S_W+2}, {576*9216:#x}\ns_mov_b32 s{S_W+3}, 0x20000")
    srd(a,S_H,P_WS,H_SZ,H_OFF)
    a(f"""s_and_b32 s60, s{S_FJ}, 1
    s_mul_i32 s61, s{S_FJ}, 9
    s_add_u32 s62, s61, s60
    s_lshl_b32 s{S_LINE}, s62, 6
    s_add_u32 s63, s{S_LINE}, 512
    s_sub_u32 s64, s{S_LINE}, 128
    s_cmp_eq_u32 s60, 0
    s_cselect_b32 s{S_LINEH}, s63, s64
    s_add_u32 s62, s62, s{S_FH}
    s_lshl_b32 s{S_FC}, s62, 10
    s_lshl_b32 s64, s{S_FH}, 9""")
    a(f"""s_add_u32 s63, s61, 8
    s_cmp_eq_u32 s60, 0
    s_cselect_b32 s63, s63, s61
    s_lshl_b32 s63, s63, 10
    s_add_u32 s{S_FCH}, s63, s64
    s_lshl_b32 s{S_M0}, s{SW}, 11""")
    a(f"""v_lshrrev_b32 v10, 3, v0
    v_bfe_u32 v11, v0, 1, 2
    v_bfe_u32 v12, v0, 4, 1
    v_xor_b32 v11, v11, v12
    s_lshl_b32 s60, s{S_FH}, 1
    v_xor_b32 v11, s60, v11
    v_and_b32 v12, 1, v0
    v_lshlrev_b32 v12, 4, v12
    v_lshl_add_u32 v11, v11, 5, v12
    s_lshl_b32 s60, s{S_MW}, 4
    v_add_u32 v12, s60, v10
    v_mul_u32_u24 v12, 9216, v12
    v_add_u32 v{VOW0}, v11, v12
    v_add_u32 v{VOW1}, {8*9216-1024}, v{VOW0}""")
    a(f"""s_lshl_b32 s60, s{S_MI}, 7
    s_lshl_b32 s61, s{SW}, 4
    s_add_u32 s60, s60, s61
    v_add_u32 v12, s60, v10
    v_mul_u32_u24 v12, 1152, v12
    v_and_b32 v11, 7, v0
    v_lshrrev_b32 v13, 4, v0
    v_xor_b32 v11, v11, v13
    v_lshl_add_u32 v{VOX0}, v11, 4, v12
    v_xor_b32 v11, 4, v11
    v_lshl_add_u32 v{VOX1}, v11, 4, v12
    v_add_u32 v{VOX1}, {8*1152-1024}, v{VOX1}""")
def phaseA_setup2(a):
    a(f"""v_bfe_u32 v10, v0, 4, 1
    v_lshrrev_b32 v11, 5, v0
    v_bfe_u32 v12, v0, 2, 2
    v_and_b32 v13, 3, v0
    v_lshl_add_u32 v14, v11, 3, v12
    v_lshlrev_b32 v14, 7, v14
    v_lshl_add_u32 v14, v10, 13, v14
    v_lshl_add_u32 v14, v13, 3, v14
    v_lshrrev_b32 v12, 1, v12
    v_lshl_or_b32 v12, v10, 1, v12
    s_lshl_b32 s60, s{S_FH}, 1
    v_xor_b32 v15, s60, v12
    v_lshl_add_u32 v{VA0}, v15, 5, v14
    v_xor_b32 v15, 1, v15
    v_lshl_add_u32 v{VA1}, v15, 5, v14
    s_and_b32 s60, s{S_FJ}, 1
    s_lshl_b32 s60, s60, 1
    s_add_u32 s60, s60, s{S_FH}
    v_xor_b32 v15, s60, v12
    v_lshl_add_u32 v{VAH}, v15, 5, v14""")
    a(f"""v_and_b32 v10, 31, v0
    s_lshl_b32 s60, s{S_MW}, 5
    v_add_u32 v12, s60, v10
    v_bfe_u32 v13, v10, 1, 3
    v_xor_b32 v13, v13, v11
    v_lshlrev_b32 v13, 4, v13
    v_lshl_add_u32 v{VXR}, v12, 7, v13
    v_xor_b32 v{VXR+1}, 32, v{VXR}
    v_xor_b32 v{VXR+2}, 64, v{VXR}
    v_xor_b32 v{VXR+3}, 96, v{VXR}""")
    a(f"""s_lshl_b32 s60, s{S_MI}, 3
    s_lshl_b32 s61, s{S_MW}, 1
    s_add_u32 s60, s60, s61
    v_bfe_u32 v12, v0, 4, 1
    v_add_u32 v12, s60, v12
    s_mov_b32 s60, 147456
    v_mul_lo_u32 v12, v12, s60
    v_and_b32 v13, 15, v0
    v_lshl_add_u32 v12, v13, 4, v12
    v_lshl_add_u32 v{VOH}, v11, 8, v12""")
def silu_ops(acc,nch,soff_list,sc):
    ops=[]
    for cc in range(nch):
        b=acc+16*cc
        for i in range(8): ops.append(f"v_mul_f32 v{VT+i}, {f2u(-LOG2E):#x}, v{b+i}")
        for i in range(8): ops.append(f"v_exp_f32 v{VT+i}, v{VT+i}")
        for i in range(8): ops.append(f"v_mul_f32 v{b+8+i}, v{b+i}, v{b+8+i}")
        for i in range(8): ops.append(f"v_add_f32 v{VT+i}, 1.0, v{VT+i}")
        for i in range(8): ops.append(f"v_rcp_f32 v{VT+i}, v{VT+i}")
        ops.append("s_nop 0")
        for i in range(8): ops.append(f"v_mul_f32 v{b+8+i}, v{b+8+i}, v{VT+i}")
        vp=b if OPT.get("inpl") else VP+4*cc
        for i in range(4): ops.append(f"v_cvt_pk_bf16_f32 v{vp+i}, v{b+8+2*i}, v{b+9+2*i}")
        ops.append(("st",soff_list[cc],vp))
    return ops
def phaseA(a,nslots=10,bar_step=3,sc="",pre_hook=None,pass_hook=None,tail=True):
    NST=45
    items=[]
    for t in range(NST):
        if t<9: items.append(("X",t))
        items.append(("W",t))
    slot_of={it:i%nslots for i,it in enumerate(items)}
    nxt=[0]
    def issue_item():
        if nxt[0]>=len(items): return
        it=items[nxt[0]]; nxt[0]+=1
        if OPT.get("nodma") and nxt[0]>20: return
        k,t=it; p,tt=divmod(t,9)
        a(f"s_add_u32 m0, s{S_M0}, {slot_of[it]*SLOT}")
        if k=="X":
            a(f"s_movk_i32 s{S_T}, {tt*128}")
            a.vmem(f"buffer_load_dwordx4 v{VOX0}, {sr(S_X,4)}, s{S_T} offen lds",("st",t))
            a.vmem(f"buffer_load_dwordx4 v{VOX1}, {sr(S_X,4)}, s{S_T} offen offset:1024 lds",("st",t))
        else:
            base=S_LINE if p<4 else S_LINEH
            a(f"s_add_u32 s{S_T}, s{base}, {tt*64*9216+(p*128 if p<4 else 0)}")
            a.vmem(f"buffer_load_dwordx4 v{VOW0}, {sr(S_W,4)}, s{S_T} offen lds",("st",t))
            a.vmem(f"buffer_load_dwordx4 v{VOW1}, {sr(S_W,4)}, s{S_T} offen offset:1024 lds",("st",t))
    for i in range(nslots): issue_item()
    phaseA_setup2(a)
    if pre_hook: pre_hook()
    cur={"W":0,"X":0}
    def win(kind,slot,regs):
        base=slot*SLOT; w=(base//49152)*49152
        if w!=cur[kind]:
            d=w-cur[kind]
            for r in regs: a(f"v_add_u32 v{r}, {d&0xffffffff:#x}, v{r}")
            cur[kind]=w
        return base-w
    def reads(n,sel=(0,1)):
        t,s=divmod(n,4); p=t//9
        o=win("W",slot_of[("W",t)],[VA0,VA1,VAH])
        fb=FR+8*(n%2)
        for cc in range(2 if p<4 else 1):
            if cc not in sel: continue
            va=[VA0,VA1][cc] if p<4 else VAH
            for tt in range(2):
                a.lds(f"ds_read_b64_tr_b16 {vr(fb+4*cc+2*tt,2)}, v{va} offset:{o+(16*s+4*tt)*128}",("n",n))
        if p==0 and 0 in sel:
            o=win("X",slot_of[("X",t)],[VXR,VXR+1,VXR+2,VXR+3])
            a.lds(f"ds_read_b128 {vr(XF+4*n,4)}, v{VXR+s} offset:{o}",("n",n))
    a.wait_vm(("st",0)); a("s_barrier")
    reads(0)
    pend=[]; freeq=[0]; freed=[0]
    def drain(k):
        for _ in range(k):
            if not pend: return
            op=pend.pop(0)
            if isinstance(op,tuple):
                _,so,vp=op
                a(so)
                a.vmem(f"buffer_store_dwordx4 {vr(vp,4)}, v{VOH}, {sr(S_H,4)}, s{S_T} offen {sc}","hst")
            elif not OPT.get("nosilu"): a(op)
    for n in range(NST*4):
        t,s=divmod(n,4); p,tt=divmod(t,9); kn=n-36*p
        free=0
        BG=OPT.get("bg",1)
        if s==bar_step and t+1<NST and (t<9 or (t+1)%BG==0):
            if OPT.get("lgfirst"): a.wait_lg(("n",n))
            a.wait_vm(("st",min(NST-1,t+(1 if t<8 else BG))))
            if not OPT.get("nobar"): a("s_barrier")
            upto=t if OPT.get("lgfirst") else t-1
            freeq[0]+=sum(2 if q<9 else 1 for q in range(freed[0],upto+1)); freed[0]=upto+1
        free=min(freeq[0],2 if t<10 else 1); freeq[0]-=free
        ilv=OPT.get("ilv")
        if n+1<NST*4 and not ilv: reads(n+1)
        a.wait_lg(("n",n))
        fb=FR+8*(n%2); acc=ACC[p%2]
        for cc in range(2 if p<4 else 1):
            d=vr(acc+16*cc,16)
            if OPT.get("m16"):
                for q in range(2):
                    d4=vr(acc+16*cc+8*(kn%2)+4*q,4)
                    a(f"v_mfma_f32_16x16x32_bf16 {d4}, {vr(fb+4*cc,4)}, {vr(XF+4*(kn^q),4)}, {d4 if kn>1 else 0}")
            else: a(f"v_mfma_f32_32x32x16_bf16 {d}, {vr(fb+4*cc,4)}, {vr(XF+4*kn,4)}, {d if kn else 0}")
            if ilv and n+1<NST*4: reads(n+1,(cc,) if p<4 else (0,1))
            if cc==0:
                for _ in range(free): issue_item()
            if kn>=3: drain(2 if p<4 else 4)
        if kn==35:
            assert not pend
            if p<4: so=[f"s_add_u32 s{S_T}, s{S_FC}, {p*2048+cc*512}" for cc in range(2)]
            else: so=[f"s_mov_b32 s{S_T}, s{S_FCH}"]
            pend=silu_ops(acc,2 if p<4 else 1,so,sc)
        if pass_hook: pass_hook(n)
    if tail:
        a("s_nop 15")
        drain(1000)
    return pend,drain

BASES=[0,1,2,3,4,5,6,7,256,258,260,262,512,516,768,772,1024,1280,1536,1792,2048]
SSM_LDS=16384
def ssm_params(a,sD,v,dsk=True):
    R=68
    a(f"s_lshl_b32 s72, s{sD}, 8\nv_lshlrev_b32 v1, 2, v0")
    for i,p in enumerate([P_ARE,P_AIM,P_BRE,P_BIM,P_CRE,P_CIM]):
        srd(a,R,p,576*256)
        a.vmem(f"buffer_load_dword v{v+i}, v1, {sr(R,4)}, s72 offen","par")
    a(f"s_lshl_b32 s73, s{sD}, 1\nv_mov_b32 v10, 0")
    srd(a,R,P_LDT,1152); a.vmem(f"buffer_load_ushort v{v+6}, v10, {sr(R,4)}, s73 offen","par")
    if dsk: srd(a,R,P_DSK,1152); a.vmem(f"buffer_load_ushort v{v+7}, v10, {sr(R,4)}, s73 offen","par")
def ssm_wave(a,sD,sLB,sc_ld="",sc_st="",pre_u_hook=None,params=True,st=None,phase=None):
    R=68; YT=0; XT=32*272
    KR0=0; KR1=4160; UZ=8320; U0=8832; T2=12928
    if params: ssm_params(a,sD,2)
    else: a("v_lshlrev_b32 v1, 2, v0")
    a(f"v_add_u32 v11, s{sLB}, v1")
    a(f"v_and_b32 v12, 31, v0\nv_lshrrev_b32 v13, 5, v0\nv_mul_u32_u24 v14, 272, v12\nv_lshl_add_u32 v14, v13, 4, v14\nv_add_u32 v14, s{sLB}, v14")
    if pre_u_hook: pre_u_hook()
    if phase is None: ssm_uload(a,sD,sc_ld)
    if phase!="rest": ssm_kgen(a)
    if phase=="kgen": return
    ssm_rest(a,sD,sLB,sc_st,st,phase)
def ssm_uload(a,sD,sc_ld,v1=1):
    R=68
    srd(a,R,P_WS,T_SZ,XT_OFF)
    a(f"s_lshl_b32 s72, s{sD}, 12\nv_lshlrev_b32 v{v1}, 4, v0")
    for i in range(4): a.vmem(f"buffer_load_dwordx4 {vr(120+4*i,4)}, v{v1}, {sr(R,4)}, s72 offen offset:{1024*i} {sc_ld}","u")
def ssm_kgen(a):
    YT=0; XT=32*272
    a.wait_vm("par")
    hi=f2u(LOG2E); lo=f2u(LOG2E-struct.unpack("<f",struct.pack("<I",hi))[0])
    a(f"""v_lshlrev_b32 v8, 16, v8
    s_mov_b32 s74, {hi:#x}
    v_mul_f32 v15, s74, v8
    v_fma_f32 v16, v8, s74, -v15
    v_fmac_f32 v16, {lo:#x}, v8
    v_exp_f32 v15, v15
    v_mul_f32 v16, {f2u(math.log(2)):#x}, v16
    v_fma_f32 v15, v15, v16, v15
    v_cvt_pk_bf16_f32 v15, v15, v15
    v_lshlrev_b32 v8, 16, v15""")
    KA=100
    PK=OPT.get("pk")
    def cmul(L,d,x,y,t):
        assert d!=x and d!=y
        if PK:
            L.append(f"v_pk_mul_f32 {vr(t,2)}, {vr(x,2)}, {vr(y,2)} op_sel:[1,1] op_sel_hi:[1,0]")
            L.append(f"v_pk_fma_f32 {vr(d,2)}, {vr(x,2)}, {vr(y,2)}, {vr(t,2)} op_sel:[0,0,0] op_sel_hi:[0,1,1] neg_lo:[0,0,1]")
        else:
            L+= [f"v_mul_f32 v{t}, v{x+1}, v{y+1}",f"v_mul_f32 v{t+1}, v{x+1}, v{y}",f"v_fma_f32 v{d}, v{x}, v{y}, -v{t}",f"v_fma_f32 v{d+1}, v{x}, v{y+1}, v{t+1}"]
    def put(L,off,x,neg,r):
        L+= [f"v_cvt_pk_bf16_f32 v{r}, v{x}, {'-' if neg else ''}v{x+1}",f"ds_write_b32 v11, v{r} offset:{off}"]
    for rnd in range(2):
        for i in range(6): a(f"v_lshlrev_b32 v{22+i}, 16, v{2+i}" if rnd==0 else f"v_and_b32 v{22+i}, 0xffff0000, v{2+i}")
        a(f"""v_mul_f32 v22, v8, v22
        v_mul_f32 v23, v8, v23
        v_mul_f32 v24, v8, v24
        v_mul_f32 v25, v8, v25
        v_mul_f32 v20, {f2u(LOG2E):#x}, v22
        v_mul_f32 v21, {f2u(1/(2*math.pi)):#x}, v23""")
        E=[]
        for k,(d,p) in enumerate([(30,1),(32,8),(34,256)]):
            t=56+2*k
            E.append([f"v_mul_f32 v{t}, {f2u(float(p)):#x}, v20",f"v_mul_f32 v{t+1}, {f2u(float(p)):#x}, v21",f"v_exp_f32 v{t}, v{t}",f"v_fract_f32 v{t+1}, v{t+1}",f"v_cos_f32 v{d}, v{t+1}",f"v_sin_f32 v{d+1}, v{t+1}",f"v_mul_f32 v{d}, v{t}, v{d}",f"v_mul_f32 v{d+1}, v{t}, v{d+1}"])
        L=[]; cmul(L,28,24,26,40)
        for x in L: a(x)
        for row in zip(*E):
            for x in row: a(x)
        Y=["v_mov_b32 v48, 0x3f80",f"ds_write_b32 v11, v48 offset:{YT}"]; put(Y,YT+272,32,False,44)
        cur=32
        for aa in range(2,32):
            d=36 if cur!=36 else 38
            cmul(Y,d,cur,32,40); put(Y,YT+272*aa,d,False,44+aa%2); cur=d
        X=[]; row=lambda b: XT+272*BASES.index(b); n=[0]
        def xp(b,x): put(X,row(b),x,True,46+n[0]%2); n[0]+=1
        xp(0,28); cur=28
        for b in range(1,8):
            d=62 if cur!=62 else 64
            cmul(X,d,cur,30,42); xp(b,d); cur=d
        cmul(X,50,30,30,42); cmul(X,52,50,50,42)
        cmul(X,54,28,34,42); xp(256,54)
        cmul(X,62,54,50,42); xp(258,62); cmul(X,64,62,50,42); xp(260,64); cmul(X,62,64,50,42); xp(262,62)
        cmul(X,28,54,34,42); xp(512,28); cmul(X,62,28,52,42); xp(516,62)
        cmul(X,54,28,34,42); xp(768,54); cmul(X,62,54,52,42); xp(772,62)
        cur=54
        for b in [1024,1280,1536,1792,2048]:
            d=28 if cur!=28 else 54
            cmul(X,d,cur,34,42); xp(b,d); cur=d
        while X or Y:
            if Y: a(Y.pop(0))
            if X: a(X.pop(0))
        a("s_waitcnt lgkmcnt(0)")
        for s_ in range(8):
            a(f"ds_read_b128 {vr(136+8*s_,4)}, v14 offset:{YT+32*s_}\nds_read_b128 {vr(140+8*s_,4)}, v14 offset:{XT+32*s_}")
        for q in range(8):
            a(f"s_waitcnt lgkmcnt({14-2*q})")
            a(f"v_mfma_f32_32x32x16_bf16 {vr(KA,16)}, {vr(136+8*q,4)}, {vr(140+8*q,4)}, {vr(KA,16) if (rnd or q) else 0}")
def ssm_rest(a,sD,sLB,sc_st,st,phase):
    R=68; KA=100
    KR0=0; KR1=4160; UZ=8320; U0=8832; T2=12928
    if st: st(0)
    a("""v_and_b32 v15, 3, v12
    v_lshlrev_b32 v16, 1, v15
    v_add_u32 v16, 256, v16
    v_and_b32 v17, 1, v12
    v_lshlrev_b32 v17, 2, v17
    v_bfe_u32 v18, v12, 1, 1
    v_lshl_add_u32 v17, v18, 8, v17
    v_add_u32 v17, 512, v17
    v_subrev_u32 v18, 12, v12
    v_lshlrev_b32 v18, 8, v18
    v_cmp_gt_u32 vcc, 16, v12
    v_cmp_gt_u32 s[76:77], 12, v12
    v_cmp_gt_u32 s[78:79], 8, v12
    v_cndmask_b32 v18, v18, v17, vcc
    v_cndmask_b32 v18, v18, v16, s[76:77]
    v_cmp_gt_u32 vcc, 21, v12
    v_cndmask_b32 v18, v18, v12, s[78:79]
    v_lshlrev_b32 v18, 1, v18
    v_lshl_add_u32 v18, v13, 6, v18""")
    a(f"v_add_u32 v18, s{sLB}, v18\nv_lshl_add_u32 v16, v0, 4, s{sLB}")
    if phase!="rest":
        for j in range(8): a(f"v_cvt_pk_bf16_f32 v{56+j}, v{KA+2*j}, v{KA+2*j+1}")
    a("s_and_saveexec_b64 s[76:77], vcc")
    for r in range(16):
        aa=8*(r//4)+r%4
        a(f"ds_write_b16{'_d16_hi' if r%2 else ''} v18, v{56+r//2} offset:{T2+16*aa}")
    a("s_mov_b64 exec, s[76:77]")
    a.wait_vm("u")
    for i in range(4): a(f"ds_write_b128 v16, {vr(120+4*i,4)} offset:{U0+1024*i}")
    a("v_mov_b32 v40, 0\nv_mov_b32 v41, 0\nv_mov_b32 v42, 0\nv_mov_b32 v43, 0\nv_cmp_gt_u32 vcc, 32, v0\ns_and_saveexec_b64 s[76:77], vcc")
    a(f"ds_write_b128 v16, v[40:43] offset:{UZ}\ns_mov_b64 exec, 15\nds_write_b128 v16, v[40:43] offset:{KR0+4096}\nds_write_b128 v16, v[40:43] offset:{KR1+4096}\ns_mov_b64 exec, s[76:77]")
    a(f"v_sub_u32 v17, 63, v0\nv_lshl_add_u32 v17, v17, 4, s{sLB}\nv_lshlrev_b32 v15, 3, v0\nv_sub_u32 v15, 511, v15")
    for e in range(9): a(f"v_subrev_u32 v{20+e}, {e}, v15")
    a("v_max_i32 v28, 0, v28")
    for e in range(9): a(f"v_cvt_f32_u32 v{20+e}, v{20+e}")
    for e in range(9): a(f"v_cvt_pk_bf16_f32 v{20+e}, v{20+e}, v{20+e}")
    for e in range(9): a(f"v_and_b32 v{20+e}, 0xffff0000, v{20+e}")
    for e in range(9): a(f"v_cvt_u32_f32 v{20+e}, v{20+e}")
    for e in range(9): a(f"v_lshl_add_u32 v{20+e}, v{20+e}, 1, s{sLB}")
    a("s_waitcnt lgkmcnt(0)")
    for i in range(2): a(f"ds_read_u16 v{60+2*i}, v17 offset:{T2+1024*(3-i)+16}\nds_read_u16 v{61+2*i}, v17 offset:{T2+1024*(3-i)}")
    for k in range(3): a(f"ds_read_u16 v{64+k}, v17 offset:{T2+1024+16-8*k}")
    for e in range(9): a(f"ds_read_u16 v{30+e}, v{20+e} offset:{T2}")
    a("v_and_b32 v15, 1, v0\nv_cmp_eq_u32 vcc, 0, v15\ns_mov_b32 s74, 0x10001\ns_waitcnt lgkmcnt(12)")
    for i in range(2):
        h,l_=60+2*i,61+2*i; o=68+8*i
        a(f"""v_cndmask_b32 v15, v{l_}, v{h}, vcc
        v_mul_u32_u24 v{o}, s74, v{h}
        v_mul_u32_u24 v{o+2}, s74, v{l_}
        v_lshl_or_b32 v{o+1}, v15, 16, v{h}
        v_lshl_or_b32 v{o+5}, v{l_}, 16, v15
        v_mov_b32 v{o+3}, v{o+2}
        v_mov_b32 v{o+4}, v{o}
        v_mov_b32 v{o+6}, v{o+2}
        v_mov_b32 v{o+7}, v{o+2}
        ds_write_b128 v16, {vr(o,4)} offset:{KR0+1024*i}
        ds_write_b128 v16, {vr(o+4,4)} offset:{KR1+1024*i}""")
    a(f"""s_waitcnt lgkmcnt(13)
    v_mul_u32_u24 v84, s74, v64
    v_mul_u32_u24 v85, s74, v65
    v_lshl_or_b32 v86, v66, 16, v65
    v_mul_u32_u24 v87, s74, v66
    v_lshl_or_b32 v88, v65, 16, v64
    v_mov_b32 v89, v85
    v_mov_b32 v90, v87
    v_mov_b32 v91, v87
    ds_write_b128 v16, v[84:87] offset:{KR0+2048}
    ds_write_b128 v16, v[88:91] offset:{KR1+2048}
    v_cmp_eq_u32 vcc, 63, v0
    s_waitcnt lgkmcnt(6)
    s_nop 0
    v_cndmask_b32 v38, v38, 0, vcc""")
    for e in range(4): a(f"v_lshl_or_b32 v{40+e}, v{31+2*e}, 16, v{30+2*e}")
    for e in range(4): a(f"v_lshl_or_b32 v{44+e}, v{32+2*e}, 16, v{31+2*e}")
    a(f"ds_write_b128 v16, v[40:43] offset:{KR0+3072}\nds_write_b128 v16, v[44:47] offset:{KR1+3072}")
    a(f"""v_and_b32 v12, 15, v0
    v_lshrrev_b32 v13, 4, v0
    v_or_b32 v15, 1, v12
    v_sub_u32 v15, {2031-256}, v15
    v_lshlrev_b32 v15, 1, v15
    v_and_b32 v17, 1, v12
    v_sub_u32 v17, 1, v17
    v_mul_u32_u24 v17, {KR1}, v17
    v_add3_u32 v15, v15, v17, s{sLB}
    v_lshl_add_u32 v20, v13, 4, v15
    v_subrev_u32 v21, 1024, v20
    v_subrev_u32 v22, 2048, v20
    v_subrev_u32 v23, 3072, v20
    v_lshlrev_b32 v24, 5, v12
    v_lshl_add_u32 v24, v13, 4, v24
    v_add_u32 v24, s{sLB}, v24
    v_add_u32 v24, {U0-32}, v24
    v_lshrrev_b32 v15, 3, v12
    v_add_u32 v15, 2, v15
    v_cmp_eq_u32 vcc, v15, v13
    v_and_b32 v15, 1, v12
    v_lshlrev_b32 v15, 4, v15
    v_lshlrev_b32 v15, v15, v9
    v_cndmask_b32 v15, 0, v15, vcc
    v_bfe_u32 v17, v12, 1, 2""")
    for j in range(4): a(f"v_cmp_eq_u32 {'vcc' if j==0 else sr(72+2*j,2)}, {j}, v17")
    for j in range(4): a(f"v_cndmask_b32 v{28+j}, 0, v15, {'vcc' if j==0 else sr(72+2*j,2)}")
    a(f"v_and_b32 v15, 1, v13\nv_lshlrev_b32 v1, 9, v15\nv_lshl_add_u32 v1, v12, 5, v1\nv_lshrrev_b32 v15, 1, v13\nv_lshl_add_u32 v1, v15, 4, v1")
    a("s_waitcnt lgkmcnt(0)")
    if st: st(1)
    AC=32; FB=64
    def rd(r):
        f=FB+64*(r%2); L=[]
        if r: L+=[f"v_subrev_u32 v{x}, 64, v{x}" for x in range(20,25)]
        for k in range(8):
            o=128*(1-k%2)
            L.append(f"ds_read_b128 {vr(f+32+4*k,4)}, v24 offset:{512*k}")
            L.append(f"ds_read2_b32 {vr(f+4*k,2)}, v{20+k//2} offset0:{o} offset1:{o+1}")
            L.append(f"ds_read2_b32 {vr(f+4*k+2,2)}, v{20+k//2} offset0:{o+2} offset1:{o+3}")
        return L
    for x in rd(0): a(x)
    for r in range(8):
        f=FB+64*(r%2); a("s_waitcnt lgkmcnt(0)")
        L=rd(r+1) if r<7 else []
        if r==0:
            for c in range(8):
                a(f"v_mfma_f32_16x16x32_bf16 {vr(AC+4*c,4)}, v[28:31], {vr(f+32+4*c,4)}, 0")
        for ii in range(8):
            for m in range(8-ii):
                d=vr(AC+4*(ii+m),4)
                a(f"v_mfma_f32_16x16x32_bf16 {d}, {vr(f+4*ii,4)}, {vr(f+32+4*m,4)}, {d}")
                if L: a(L.pop(0))
        assert not L
    if st: st(2)
    srd(a,R,P_WS,T_SZ,AT_OFF)
    a(f"s_lshl_b32 s72, s{sD}, 12\ns_nop 2")
    for c in range(8): a(f"v_cvt_pk_bf16_f32 v{64+2*c}, v{AC+4*c}, v{AC+4*c+1}\nv_cvt_pk_bf16_f32 v{65+2*c}, v{AC+4*c+2}, v{AC+4*c+3}")
    a("s_nop 1")
    for k in range(4):
        a(f"v_permlane16_swap_b32 v{64+4*k}, v{66+4*k}\nv_permlane16_swap_b32 v{65+4*k}, v{67+4*k}")
    for k in range(4): a.vmem(f"buffer_store_dwordx4 {vr(64+4*k,4)}, v1, {sr(R,4)}, s72 offen offset:{1024*k} {sc_st}","ast")
SSM_LDS=8320+5200+4608
SSM_LDS=18176

B_VH,B_VW,B_VR=2,7,11
B_ACC=16; B_HB=96; B_FR=200; B_AT=232; B_G=242; B_VO=247; B_VAD=248; B_VAR=251; B_VRED=252
SB_H,SB_W,SB_O,SB_A,SB_G=40,44,48,68,72
SB_MT,SB_NT,SB_KQ,SB_BH,SB_BW,SB_M0,SB_T,SB_T2=52,53,54,55,56,57,58,59
def b_chunks():
    c=[]
    for p in range(4):
        for i in range(4):
            for fh in range(2): c.append(9*i+(i&1)+2*p+fh)
    for i in range(4): c.append(9*i+(8 if i%2==0 else 0))
    assert sorted(c)==list(range(36))
    return c
def phaseB_map(a,sid,endlabel):
    a(f"""s_and_b32 s60, s{sid}, 7
    s_lshr_b32 s61, s{sid}, 3
    s_cmp_ge_u32 s61, 30
    s_cbranch_scc1 {endlabel}
    s_mul_i32 s60, s60, 30
    s_add_u32 s60, s60, s61
    s_cmp_ge_u32 s60, 234
    s_cbranch_scc1 {endlabel}
    s_mul_hi_u32 s{SB_MT}, s60, {(2**32+8)//9:#x}
    s_mul_i32 s61, s{SB_MT}, 9
    s_sub_u32 s{SB_NT}, s60, s61""")
def phaseB_setup(a,NS,ldsbase=0):
    a(f"s_and_b32 s{SB_KQ}, s{SW}, 3")
    srd(a,SB_H,P_WS,H_SZ,H_OFF); srd(a,SB_W,P_WD,4608*1152); srd(a,SB_O,P_OUT,2048*1152)
    srd(a,SB_A,P_WS,T_SZ,AT_OFF); srd(a,SB_G,P_WS,8192,G_OFF)
    a(f"""s_mul_i32 s{SB_BH}, s{SB_KQ}, {36*1024}
    s_mul_i32 s{SB_BW}, s{SB_KQ}, {36*36864}
    s_mul_i32 s{SB_M0}, s{SB_KQ}, {NS*4096}
    s_add_u32 s{SB_M0}, s{SB_M0}, {ldsbase}
    s_mul_i32 s60, s{SB_MT}, {5*147456}
    v_lshl_add_u32 v{B_VH}, v0, 4, s60""")
    for j in range(1,5): a(f"v_add_u32 v{B_VH+j}, {147456*j}, v{B_VH}")
    a(f"""v_lshrrev_b32 v15, 3, v0
    v_bfe_u32 v1, v0, 1, 2
    v_bfe_u32 v{B_VW+1}, v0, 4, 2
    v_xor_b32 v1, v1, v{B_VW+1}
    v_and_b32 v{B_VW+1}, 1, v0
    v_lshlrev_b32 v{B_VW+1}, 4, v{B_VW+1}
    v_lshl_add_u32 v1, v1, 5, v{B_VW+1}
    v_mul_u32_u24 v15, 1152, v15
    s_lshl_b32 s60, s{SB_NT}, 7
    v_add3_u32 v{B_VW}, v1, v15, s60""")
    for i in range(1,4): a(f"v_add_u32 v{B_VW+i}, {8192*i}, v{B_VW}")
def phaseB_setup2(a,NS,aslot):
    if OPT.get("h4"):
        a(f"""v_lshrrev_b32 v15, 2, v0
        v_bfe_u32 v1, v0, 3, 2
        v_lshlrev_b32 v1, 5, v1
        v_lshl_add_u32 v1, v15, 7, v1
        v_and_b32 v15, 3, v0
        v_lshl_add_u32 v1, v15, 3, v1
        v_add_u32 v{B_VR}, s{SB_M0}, v1""")
    else: phaseB_setup2a(a)
    phaseB_setup2b(a,NS,aslot)
def phaseB_setup2a(a):
    a(f"""v_bfe_u32 v1, v0, 2, 3
    v_lshrrev_b32 v15, 5, v0
    v_lshl_add_u32 v15, v15, 4, v1
    v_lshrrev_b32 v1, 1, v1
    v_lshlrev_b32 v1, 5, v1
    v_lshl_add_u32 v1, v15, 7, v1
    v_and_b32 v15, 3, v0
    v_lshl_add_u32 v1, v15, 3, v1
    v_add_u32 v{B_VR}, s{SB_M0}, v1""")
def phaseB_setup2b(a,NS,aslot):
    for d in range(1,4): a(f"v_xor_b32 v{B_VR+d}, {32*d}, v{B_VR}")
    a(f"""s_lshl_b32 s60, s{SB_NT}, 6
    s_lshl_b32 s61, s{SB_KQ}, 4
    s_add_u32 s60, s60, s61
    s_lshl_b32 s61, s60, 12
    s_mul_i32 s62, s{SB_MT}, 160
    s_add_u32 s61, s61, s62""")
    for i in range(3):
        a(f"""v_add_u32 v1, {64*i}, v0
        v_mul_u32_u24 v15, 6554, v1
        v_lshrrev_b32 v15, 16, v15
        v_mul_u32_u24 v{B_VAD+i}, {4096-160}, v15
        v_lshl_add_u32 v{B_VAD+i}, v1, 4, v{B_VAD+i}
        v_add_u32 v{B_VAD+i}, s61, v{B_VAD+i}""")
        if i: a(f"v_subrev_u32 v{B_VAD+i}, {1024*i}, v{B_VAD+i}")
    a(f"v_cmp_gt_u32 vcc, 32, v0\nv_mov_b32 v1, {BIG:#x}\ns_nop 0\nv_cndmask_b32 v{B_VAD+2}, v1, v{B_VAD+2}, vcc")
    a(f"""v_lshrrev_b32 v1, 2, v0
    v_mul_u32_u24 v1, 160, v1
    v_and_b32 v15, 3, v0
    v_lshl_add_u32 v1, v15, 3, v1
    v_add_u32 v{B_VAR}, s{SB_M0}, v1""")
    a(f"""s_mul_i32 s62, s{SB_MT}, 80
    v_and_b32 v1, 15, v0
    v_add_u32 v1, s62, v1
    v_lshlrev_b32 v{B_G}, 2, v1
    v_mul_u32_u24 v1, 1152, v1
    v_lshrrev_b32 v15, 4, v0
    v_lshl_add_u32 v1, v15, 3, v1
    s_lshl_b32 s60, s60, 1
    v_add_u32 v{B_VO}, s60, v1
    v_lshl_add_u32 v{B_VRED}, v0, 4, s{SB_M0}""")
def phaseB(a,PD=4,ldsbase=0,sc_h="",sc_a="",sc_o="",step_hook=None,pre_at_hook=None,at_step=None,bar="s_barrier"):
    NS=PD+1; C=b_chunks(); N=36
    if at_step is None: at_step=N-NS
    aslot=(N-NS)%NS
    def issue_w(n,i):
        if n>=N: return
        if i==0: a(f"s_add_u32 m0, s{SB_M0}, {(n%NS)*4096}\ns_add_u32 s{SB_T2}, s{SB_BW}, {C[n]*36864}")
        a.vmem(f"buffer_load_dwordx4 v{B_VW+i}, {sr(SB_W,4)}, s{SB_T2} offen offset:{1024*i} lds",("W",n))
    def issue_h(n,j):
        if n>=N: return
        if j==0: a(f"s_add_u32 s{SB_T}, s{SB_BH}, {C[n]*1024}")
        a.vmem(f"buffer_load_dwordx4 {vr(B_HB+20*(n%PD)+4*j,4)}, v{B_VH+j}, {sr(SB_H,4)}, s{SB_T} offen {sc_h}",("h",n))
    def reads(n):
        for d in range(4):
            for t in range(2):
                a.lds(f"ds_read_b64_tr_b16 {vr(B_FR+16*(n%2)+4*d+2*t,2)}, v{B_VR+d} offset:{(n%NS)*4096+(2048 if OPT.get('h4') else 1024)*t}",("f",n))
    def issue_at():
        if pre_at_hook: pre_at_hook()
        a(f"s_add_u32 m0, s{SB_M0}, {aslot*4096}\ns_nop 0")
        for i in range(3): a.vmem(f"buffer_load_dwordx4 v{B_VAD+i}, {sr(SB_A,4)}, 0 offen offset:{1024*i} lds {sc_a}","at")
        for j in range(4,-1,-1): a.vmem(f"buffer_load_dword v{B_G+j}, v{B_G}, {sr(SB_G,4)}, 0 offen offset:{64*j} {sc_a}","at")
    for i in range(4): issue_w(0,i)
    for n in range(PD):
        if step_hook: step_hook(n-PD)
        for i in range(4): issue_w(n+1,i)
        for j in range(5): issue_h(n,j)
    phaseB_setup2(a,NS,aslot)
    a.wait_vm(("W",0)); reads(0)
    for n in range(N):
        if step_hook: step_hook(n)
        a.wait_vm(("h",n)); a.wait_vm(("W",n+1))
        a.wait_lg(("f",n))
        if n+1<N: reads(n+1)
        for j in range(5):
            for d in range(4):
                acc=vr(B_ACC+16*j+4*d,4)
                a(f"v_mfma_f32_16x16x32_bf16 {acc}, {vr(B_FR+16*(n%2)+4*d,4)}, {vr(B_HB+20*(n%PD)+4*j,4)}, {acc if n else 0}")
                if j<4 and d==0: issue_w(n+NS,j)
            issue_h(n+PD,j)
        if n==at_step: issue_at()
    if at_step>=N: issue_at()
    a("s_nop 7"); a.wait_vm("at")
    for j in range(5): a.lds(f"ds_read_b64_tr_b16 {vr(B_AT+2*j,2)}, v{B_VAR} offset:{aslot*4096+32*j}","a")
    a.wait_lg("a")
    lab=f"pb{id(a)%100000}"
    for k in range(4):
        a(f"s_cmp_lg_u32 s{SB_KQ}, {k}\ns_cbranch_scc1 {lab}_w{k}")
        for d in range(4):
            if d==k: continue
            for j in range(5): a(f"ds_write_b128 v{B_VRED}, {vr(B_ACC+16*j+4*d,4)} offset:{(d*5+j)*1024}")
        for j in range(5):
            for i in range(4):
                if k: a(f"v_mov_b32 v{B_ACC+16*j+i}, v{B_ACC+16*j+4*k+i}")
        a(f"{lab}_w{k}:")
    a(f"""s_mul_i32 s60, s{SB_KQ}, 5120
    s_add_u32 s60, s60, {ldsbase}
    v_lshl_add_u32 v1, v0, 4, s60
    s_waitcnt lgkmcnt(0)
    {bar}""")
    for o in range(1,4):
        a(f"s_add_u32 s60, s{SB_KQ}, {o}\ns_and_b32 s60, s60, 3\ns_mul_i32 s60, s60, {NS*4096}\nv_add_u32 v15, s60, v1")
        for j in range(5): a.lds(f"ds_read_b128 {vr(B_HB+20*(o-1)+4*j,4)}, v15 offset:{j*1024}",("r",o))
    for o in range(1,4):
        a.wait_lg(("r",o))
        for j in range(5):
            for i in range(0,4,2): a(f"v_pk_add_f32 {vr(B_ACC+16*j+i,2)}, {vr(B_ACC+16*j+i,2)}, {vr(B_HB+20*(o-1)+4*j+i,2)}")
    for j in range(5):
        b=B_ACC+16*j; t=B_ACC+16*j+4; u=B_AT+2*j
        a(f"""v_lshlrev_b32 v{t}, 16, v{u}
        v_and_b32 v{t+1}, 0xffff0000, v{u}
        v_lshlrev_b32 v{t+2}, 16, v{u+1}
        v_and_b32 v{t+3}, 0xffff0000, v{u+1}""")
        for i in range(4): a(f"v_sub_f32 v{t+i}, v{t+i}, v{b+i}")
        for i in range(4): a(f"v_fmac_f32 v{b+i}, v{B_G+j}, v{t+i}")
        a(f"v_cvt_pk_bf16_f32 v{b}, v{b}, v{b+1}\nv_cvt_pk_bf16_f32 v{b+1}, v{b+2}, v{b+3}")
        a(f"s_mov_b32 s60, {16*1152*j}")
        a.vmem(f"buffer_store_dwordx2 {vr(b,2)}, v{B_VO}, {sr(SB_O,4)}, s60 offen {sc_o}","o")

A4_ACC=[64,128]; A4_FR=32; A4_XV=192
A4_VT=224; A4_VP=240
A4_VA=2
A4_VAH=6; A4_VOW=8; A4_VOX=12; A4_VOH=16; A4_VXR=17
def xf(i): return f"a[{4*i}:{4*i+3}]" if i<64 else vr(A4_XV+4*(i-64),4)
def phaseA4_setup(a):
    a(f"""s_and_b32 s60, s2, 7
    s_lshr_b32 s61, s2, 3
    s_and_b32 s62, s60, 1
    s_lshl_b32 s62, s62, 3
    s_and_b32 s63, s61, 7
    s_add_u32 s{S_MI}, s62, s63
    s_lshr_b32 s62, s60, 1
    s_lshl_b32 s62, s62, 2
    s_lshr_b32 s63, s61, 3
    s_add_u32 s{S_FJ}, s62, s63
    s_and_b32 s{S_MW}, s{SW}, 1
    s_lshr_b32 s{S_FH}, s{SW}, 1""")
    srd(a,S_X,P_X,2048*1152)
    a(f"s_cmp_eq_u32 s{S_FH}, 0\ns_cselect_b32 s{S_W}, s{P_WG}, s{P_WU}\ns_cselect_b32 s{S_W+1}, s{P_WG+1}, s{P_WU+1}\ns_mov_b32 s{S_W+2}, {576*9216:#x}\ns_mov_b32 s{S_W+3}, 0x20000")
    a(f"""s_and_b32 s60, s{S_FJ}, 1
    s_mul_i32 s61, s{S_FJ}, 9
    s_add_u32 s62, s61, s60
    s_lshl_b32 s{S_LINE}, s62, 6
    s_add_u32 s63, s{S_LINE}, 512
    s_sub_u32 s64, s{S_LINE}, 128
    s_cmp_eq_u32 s60, 0
    s_cselect_b32 s{S_LINEH}, s63, s64
    s_lshl_b32 s{S_M0}, s{SW}, 12""")
    a(f"""v_lshrrev_b32 v20, 3, v0
    v_bfe_u32 v21, v0, 1, 2
    v_bfe_u32 v22, v0, 4, 1
    v_xor_b32 v21, v21, v22
    v_and_b32 v22, 1, v0
    v_lshlrev_b32 v22, 4, v22
    v_lshl_add_u32 v21, v21, 5, v22
    s_lshl_b32 s63, s{S_MW}, 5
    v_add_u32 v22, s63, v20
    v_mul_u32_u24 v22, 9216, v22
    v_add_u32 v{A4_VOW}, v21, v22
    v_xor_b32 v21, 64, v21
    v_add_u32 v{A4_VOW+1}, v21, v22
    v_add_u32 v{A4_VOW+1}, {8*9216-1024}, v{A4_VOW+1}
    v_add_u32 v{A4_VOW+2}, {2*(8*9216-1024)}, v{A4_VOW}
    v_add_u32 v{A4_VOW+3}, {2*(8*9216-1024)}, v{A4_VOW+1}""")
    a(f"""s_lshl_b32 s63, s{S_MI}, 7
    s_lshl_b32 s64, s{SW}, 5
    s_add_u32 s63, s63, s64
    v_add_u32 v22, s63, v20
    v_mul_u32_u24 v22, 1152, v22
    v_and_b32 v21, 7, v0
    v_lshrrev_b32 v23, 4, v0
    v_xor_b32 v21, v21, v23
    v_lshl_add_u32 v{A4_VOX}, v21, 4, v22
    v_xor_b32 v21, 4, v21
    v_lshl_add_u32 v{A4_VOX+1}, v21, 4, v22
    v_add_u32 v{A4_VOX+1}, {8*1152-1024}, v{A4_VOX+1}
    v_add_u32 v{A4_VOX+2}, {2*(8*1152-1024)}, v{A4_VOX}
    v_add_u32 v{A4_VOX+3}, {2*(8*1152-1024)}, v{A4_VOX+1}""")
def phaseA4_setup2(a):
    srd(a,S_H,P_WS,H_SZ,H_OFF)
    a(f"""s_and_b32 s60, s{S_FJ}, 1
    s_mul_i32 s61, s{S_FJ}, 9
    s_add_u32 s62, s61, s60
    s_add_u32 s62, s62, s{S_FH}
    s_lshl_b32 s{S_FC}, s62, 10
    s_add_u32 s63, s61, 8
    s_cmp_eq_u32 s60, 0
    s_cselect_b32 s63, s63, s61
    s_lshl_b32 s63, s63, 10
    s_lshl_b32 s64, s{S_FH}, 3
    s_add_u32 s{S_FCH}, s63, s64""")
    a(f"""v_lshrrev_b32 v20, 4, v0
    v_bfe_u32 v21, v0, 2, 2
    v_lshl_add_u32 v22, v20, 3, v21
    v_lshlrev_b32 v22, 7, v22
    v_and_b32 v23, 3, v0
    v_lshl_add_u32 v22, v23, 3, v22
    v_bfe_u32 v23, v0, 3, 2
    s_lshl_b32 s62, s{S_FH}, 1
    v_xor_b32 v24, s62, v23
    v_lshl_add_u32 v{A4_VA}, v24, 5, v22
    v_xor_b32 v{A4_VA+1}, 32, v{A4_VA}
    v_add_u32 v{A4_VA+2}, 8192, v{A4_VA}
    v_add_u32 v{A4_VA+3}, 8192, v{A4_VA+1}
    s_lshl_b32 s62, s60, 1
    s_add_u32 s62, s62, s{S_FH}
    v_xor_b32 v24, s62, v23
    v_lshl_add_u32 v{A4_VAH}, v24, 5, v22
    v_add_u32 v{A4_VAH+1}, 8192, v{A4_VAH}""")
    a(f"""v_and_b32 v21, 15, v0
    s_lshl_b32 s62, s{S_MW}, 6
    v_add_u32 v22, s62, v21
    v_bfe_u32 v23, v0, 1, 3
    v_xor_b32 v23, v23, v20
    v_lshlrev_b32 v23, 4, v23
    v_lshl_add_u32 v{A4_VXR}, v22, 7, v23
    v_xor_b32 v{A4_VXR+1}, 64, v{A4_VXR}""")
    a(f"""s_lshl_b32 s62, s{S_MI}, 3
    s_lshl_b32 s63, s{S_MW}, 2
    s_add_u32 s62, s62, s63
    s_mul_i32 s62, s62, 147456
    v_lshl_add_u32 v{A4_VOH}, v0, 4, s62""")
def silu4(acc,half,sbase,soff):
    ops=[]; T=A4_VT
    for g in range(4):
        if not half: G=[acc+16*0+4*g+i for i in range(4)]+[acc+16*1+4*g+i for i in range(4)]; U=[x+32 for x in G]
        else: G=[acc+4*g+i for i in range(4)]; U=[x+32 for x in G]
        n=len(G); t=T+8*(g%2); P=A4_VP+4*g
        ops+= [f"v_mul_f32 v{t+i}, {f2u(-LOG2E):#x}, v{G[i]}" for i in range(n)]
        ops+= [f"v_exp_f32 v{t+i}, v{t+i}" for i in range(n)]
        ops+= [f"v_mul_f32 v{U[i]}, v{G[i]}, v{U[i]}" for i in range(n)]
        ops+= [f"v_add_f32 v{t+i}, 1.0, v{t+i}" for i in range(n)]
        ops+= [f"v_rcp_f32 v{t+i}, v{t+i}" for i in range(n)]
        ops.append("NOP")
        ops+= [f"v_mul_f32 v{U[i]}, v{U[i]}, v{t+i}" for i in range(n)]
        ops+= [f"v_cvt_pk_bf16_f32 v{P+i}, v{U[2*i]}, v{U[2*i+1]}" for i in range(n//2)]
        ops.append(f"s_add_u32 s{S_T}, s{sbase}, {soff+147456*g}")
        ops.append(("st",P,n//2))
    return ops
def cost(op):
    if isinstance(op,tuple): return 4
    return 8 if op.startswith(("v_exp","v_rcp")) else 4
def phaseA4(a,nslots=10,sc="",pre_hook=None,step_hook=None,tail=True,side=None):
    NST=45; items=[]
    for t in range(NST):
        if t<9: items.append(("X",t))
        items.append(("W",t))
    slot_of={it:i%nslots for i,it in enumerate(items)}
    nxt=[0]
    def item_ops():
        if nxt[0]>=len(items): return []
        it=items[nxt[0]]; nxt[0]+=1
        if OPT.get("nodma") and nxt[0]>20: return []
        k,t=it; p,tt=divmod(t,9)
        o=[f"s_add_u32 m0, s{S_M0}, {slot_of[it]*SLOT}"]
        if k=="X": o.append(f"s_movk_i32 s61, {tt*128}"); vo,sd=A4_VOX,S_X
        else: o.append(f"s_add_u32 s61, s{S_LINE if p<4 else S_LINEH}, {tt*64*9216+(p*128 if p<4 else 0)}"); vo,sd=A4_VOW,S_W
        for i in range(4): o.append(("vm",f"buffer_load_dwordx4 v{vo+i}, {sr(sd,4)}, s61 offen offset:{1024*i} lds",("st",t)))
        return o
    def emit(op):
        if isinstance(op,tuple):
            if op[0]=="vm": a.vmem(op[1],op[2])
            elif op[0]=="lds": a.lds(op[1],op[2])
            elif op[0]=="st": a.vmem(f"buffer_store_dwordx{op[2]} {vr(op[1],op[2])}, v{A4_VOH}, {sr(S_H,4)}, s{S_T} offen {sc}","hst")
            elif op[0]=="fn": op[1]()
        elif op=="NOP":
            if a.l[-1].startswith("v_rcp"): a("s_nop 0")
        else: a(op)
    for i in range(nslots):
        for op in item_ops(): emit(op)
    phaseA4_setup2(a)
    if pre_hook: pre_hook()
    cur={"W":0,"X":0}
    def win(kind,slot,regs):
        base=slot*SLOT; w=(base//49152)*49152; o=[]
        if w!=cur[kind]:
            d=w-cur[kind]; o=[f"v_add_u32 v{r}, {d&0xffffffff:#x}, v{r}" for r in regs]; cur[kind]=w
        return base-w,o
    def reads(n):
        t,ss=divmod(n,2); p=t//9
        o,ops=win("W",slot_of[("W",t)],[A4_VA+i for i in range(4)]+[A4_VAH,A4_VAH+1])
        if p==3 and t==27 and ss==0 and cur["W"] and not ops: pass
        fb=A4_FR+16*(n%2)
        for f in range(4 if p<4 else 2):
            va=A4_VA+f if p<4 else A4_VAH+f
            for tt in range(2): ops.append(("lds",f"ds_read_b64_tr_b16 {vr(fb+4*f+2*tt,2)}, v{va} offset:{o+ss*4096+tt*512}",("n",n)))
        if p==0:
            o,o2=win("X",slot_of[("X",t)],[A4_VXR,A4_VXR+1]); ops+=o2
            for g in range(4): ops.append(("lds",f"ds_read_b128 {xf(4*n+g)}, v{A4_VXR+ss} offset:{o+g*2048}",("n",n)))
        return ops
    a.wait_vm(("st",0)); a("s_barrier")
    for op in reads(0): emit(op)
    pend=[]; dq=[]; freed=0; mc=[0,-99]
    N=NST*2
    for n in range(N):
        t,ss=divmod(n,2); p,tt=divmod(t,9); kn=n-18*p
        if n==54:
            pass
        a.wait_lg(("n",n))
        BG=OPT.get("bg",1)
        if ss==1 and t+1<NST and (t<9 or (t-8)%BG==0):
            a.wait_vm(("st",min(NST-1,t+(1 if t<8 else BG))))
            if not OPT.get("nobar"): a("s_barrier")
            for q in range(freed,t+1):
                dq+=item_ops()
                if q<9: dq+=item_ops()
            freed=t+1
        rq=reads(n+1) if n+1<N else []
        fb=A4_FR+16*(n%2); acc=A4_ACC[p%2]
        nm=16 if p<4 else 8
        quota=10**6 if kn>=1 else 0
        for m in range(nm):
            f,g=divmod(m,4)
            d=vr(acc+(16*f if p<4 else 32*f)+4*g,4)
            a(f"v_mfma_f32_16x16x32_bf16 {d}, {vr(fb+4*f,4)}, {xf(4*kn+g)}, {d if kn else 0}")
            bud=8; mc[0]+=1
            while bud>0:
                gap=OPT.get("gap",7) if t>9 else OPT.get("gap0",3)
                if rq: op=rq.pop(0)
                elif dq and (not isinstance(dq[0],tuple) or mc[0]-mc[1]>=gap):
                    op=dq.pop(0)
                    if isinstance(op,tuple): mc[1]=mc[0]
                elif pend and quota>0 and cost(pend[0])<=bud and not OPT.get("nosilu"): op=pend.pop(0); quota-=1
                elif side and side() is not None: op=side(True)
                else: break
                emit(op); bud-=cost(op)
        for op in rq: emit(op)
        if kn==17:
            if OPT.get("nosilu"): pend=[]
            while pend: emit(pend.pop(0))
            pend=silu4(acc,p==4,S_FC if p<4 else S_FCH,p*2048 if p<4 else 0)
        if step_hook: step_hook(n)
    for op in dq: emit(op)
    if tail:
        a("s_nop 7")
        for op in pend: emit(op)
    return pend
```

```python
import sys,copy
from parts import *
import parts
NAME="gated_mix__ssm_conv_s4__swiglu_ffn__prompt"
KN=NAME+"_kernel"
hdr=[l for l in open("cdna_kernels/"+NAME+".s.ref").read().split("\n") if l.startswith(";") and "@launch" not in l and "Override" not in l and "grid=ceil" not in l]
S_DBG=84; S_SD,S_LB,S_JOB,S_TMP=80,81,82,83
SYNC=72704+64
RINGB=81920
V_SIG,V_ONE,V_PO,V_PD=28,29,30,31
M_HB=112; M_ACC=[192,208,224,240,80]; M_FR=32
M_VH,M_VW,M_VR,M_VRED=64,69,75,79
M_VO,M_VAR,M_VAD,M_G,M_AT=96,97,98,101,2
MB_H,MB_W,MB_O,MB_A,MB_G=S_H,44,40,68,72
MB_MT,MB_NT,MB_KQ,MB_BH,MB_BW,MB_M0,MB_T,MB_T2=92,93,94,95,96,97,98,99
SPIN=20000
FL_OFF=0x1690000; S_NON=100; S_ROLE=101
class G:
    def __init__(s,**o):
        s.o=dict(bg=2,PD=4,stamps=False,pfd=10,pfw=0,sc="sc1",prio=3,c2=(8,12),c3=(16,20),at=(29,33),arr=4,side=1); s.o.update(o); s.nl=0
    def lab(s,x): s.nl+=1; return f"L{x}{s.nl}"
    def st(s,a,slot,vt=(1,29),clk=False):
        M={0:0,11:1,6:3,9:39,4:90,5:91}
        if s.o.get("dx") and not clk:
            sl,dl=s.o["dx"]
            if slot==sl: a(f"s_memrealtime s[88:89]\ns_waitcnt lgkmcnt(0)\ns_add_u32 s91, s88, {dl*100}"); a.lg=[]
            if slot==5 and sl=='n': a(f"s_add_u32 s91, s{S_NON}, {dl*100}")
            if slot==5: a("Ldx:\ns_memrealtime s[88:89]\ns_waitcnt lgkmcnt(0)\ns_sub_u32 s88, s91, s88\ns_cmp_gt_i32 s88, 0\ns_cbranch_scc1 Ldx")
        if s.o.get("dst") and slot in M and not clk:
            a(f"s_memrealtime s[88:89]\ns_waitcnt lgkmcnt(0)\ns_mov_b32 s{M[slot]}, s88"); a.lg=[]
            if slot==5:
                a(f"s_cmp_lg_u32 s{SW}, 0\ns_cbranch_scc1 Ldse\ns_mov_b64 exec, 1\nv_mov_b32 v1, 0")
                for i,r in enumerate(M.values()):
                    a(f"v_mov_b32 v2, s{r}\nglobal_atomic_umax v1, v2, s[{P_DBG}:{P_DBG+1}] offset:{4+4*i}\nv_not_b32 v3, v2\nglobal_atomic_umax v1, v3, s[{P_DBG}:{P_DBG+1}] offset:{28+4*i}\ns_nop 4")
                a("Ldse:")
        if s.o.get("p0") and slot in (1,2,3,4,12,13,14,15): return
        if slot>=100: slot=[1,2,3,4,12,13,14,15][slot-100]
        if s.o["stamps"]: stamp(a,slot,sbase=88,vt=vt,clk=clk)
    def signal(s,a,off):
        a(f"v_mov_b32 v{V_ONE}, s{S_NON}"); a.vmem(f"buffer_store_dword v{V_ONE}, v{V_SIG}, {sr(S_DBG,4)}, 0 offen offset:{off} sc1","sig")
    def poll_issue(s,a,off,vo=V_PO,vd=V_PD): a.vmem(f"buffer_load_dword v{vd}, v{vo}, {sr(S_DBG,4)}, 0 offen offset:{off} sc1","poll")
    def poll_check(s,a,off,val=None,vo=V_PO,vd=V_PD,cmp="ne"):
        if val is None: val=f"s{S_NON}"
        ok=s.lab("ok"); lp=s.lab("lp")
        a.wait_vm("poll")
        a(f"""v_cmp_{cmp}_u32 vcc, {val}, v{vd}
        s_nop 1
        s_cbranch_vccz {ok}
        s_mov_b32 s{S_TMP}, {SPIN}
        {lp}:
        buffer_load_dword v{vd}, v{vo}, {sr(S_DBG,4)}, 0 offen offset:{off} sc1
        s_sub_u32 s{S_TMP}, s{S_TMP}, 1
        s_cbranch_scc1 {ok}
        s_waitcnt vmcnt(0)
        v_cmp_{cmp}_u32 vcc, {val}, v{vd}
        s_nop 1
        s_cbranch_vccnz {lp}
        {ok}:""")
    def arrive(s,a,word,last,soff,vt):
        sk=s.lab("sk")
        a(f"s_mov_b64 exec, 1\nv_mov_b32 v{vt}, {SYNC+4*word}\nv_mov_b32 v{vt+1}, 1\nds_add_rtn_u32 v{vt}, v{vt}, v{vt+1}\ns_waitcnt lgkmcnt(0)"); a.lg=[]
        a(f"v_cmp_ne_u32 vcc, {last}, v{vt}\nv_mov_b32 v{vt}, {soff}\nv_mov_b32 v{vt+1}, s{S_NON}\ns_cbranch_vccnz {sk}")
        a(f"buffer_store_dword v{vt+1}, v{vt}, {sr(S_DBG,4)}, 0 offen sc1\n{sk}:\ns_mov_b64 exec, -1")
    def gen(s,out):
        o=s.o; a=A(); sc=o["sc"]; BG=o["bg"]; PD=o["PD"]; NS=PD+1
        END="Lend"
        prologue(a,256,END)
        if o.get('scr')==1: a("s_lshr_b32 s60, s2, 3\ns_and_b32 s2, s2, 7\ns_lshl_b32 s2, s2, 5\ns_or_b32 s2, s2, s60")
        if o.get('scr')==2: a("s_lshr_b32 s60, s2, 3\ns_xor_b32 s2, s2, s60")
        s.st(a,0,vt=(1,2)); s.st(a,16,vt=(1,2),clk=True)
        phaseA_setup(a)
        NST=45; items=[]
        for t in range(NST):
            if t<9: items.append(("X",t))
            items.append(("W",t))
        slot_of={it:i%10 for i,it in enumerate(items)}
        class St: pass
        S=St(); S.nxt=0; S.cur={"W":0,"X":0}; S.pend=[]; S.freeq=0; S.freed=0; S.side=[]
        def issue_item(a,S):
            if S.nxt>=len(items): return
            it=items[S.nxt]; S.nxt+=1; k,t=it; p,tt=divmod(t,9)
            a(f"s_add_u32 m0, s{S_M0}, {slot_of[it]*SLOT}")
            if k=="X": a(f"s_movk_i32 s{S_T}, {tt*128}"); v0_,v1_,sd=VOX0,VOX1,S_X
            else: a(f"s_add_u32 s{S_T}, s{S_LINE if p<4 else S_LINEH}, {tt*64*9216+(p*128 if p<4 else 0)}"); v0_,v1_,sd=VOW0,VOW1,S_W
            a.vmem(f"buffer_load_dwordx4 v{v0_}, {sr(sd,4)}, s{S_T} offen lds",("st",t))
            a.vmem(f"buffer_load_dwordx4 v{v1_}, {sr(sd,4)}, s{S_T} offen offset:1024 lds",("st",t))
        issue_item(a,S); issue_item(a,S)
        srd(a,S_DBG,P_DBG,256)
        a(f"""s_xor_b32 s60, s2, {o.get('nwg',0)}
        s_or_b32 s60, s60, s{SW}
        s_cmp_lg_u32 s60, 0
        s_cbranch_scc1 Lnonon
        s_memrealtime s[60:61]
        v_mov_b32 v20, 0
        s_waitcnt lgkmcnt(0)
        s_or_b32 s60, s60, 1
        v_mov_b32 v21, s60
        s_mov_b64 exec, 1
        buffer_store_dword v21, v20, {sr(S_DBG,4)}, 0 offen sc1
        s_mov_b64 exec, -1
        Lnonon:""")
        gv=48
        srd(a,68,P_GW,1152)
        a(f"s_lshl_b32 s70, s{S_MI}, 7\ns_mov_b32 s70, 1152\ns_lshl_b32 s72, s{S_MI}, 7\ns_lshl_b32 s73, s{S_FJ}, 3\ns_add_u32 s72, s72, s73\ns_add_u32 s72, s72, s{SW}\ns_mul_i32 s73, s72, 1152")
        a(f"v_lshlrev_b32 v{gv}, 4, v0\nv_add_u32 v{gv+1}, 1024, v{gv}\nv_cmp_gt_u32 vcc, 8, v0\nv_mov_b32 v{gv+2}, {BIG:#x}\ns_nop 0\nv_cndmask_b32 v{gv+1}, v{gv+2}, v{gv+1}, vcc")
        a.vmem(f"buffer_load_dwordx4 {vr(gv+2,4)}, v{gv}, {sr(S_X,4)}, s73 offen","g")
        a.vmem(f"buffer_load_dwordx4 {vr(gv+6,4)}, v{gv+1}, {sr(S_X,4)}, s73 offen","g")
        a.vmem(f"buffer_load_dwordx4 {vr(gv+10,4)}, v{gv}, {sr(68,4)}, 0 offen","g")
        a.vmem(f"buffer_load_dwordx4 {vr(gv+14,4)}, v{gv+1}, {sr(68,4)}, 0 offen","g")
        for i in range(o.get('ini',10)-2): issue_item(a,S)
        def touch(a,ptr,vt=70):
            srd(a,76,ptr,4608*1152)
            a(f"""s_lshl_b32 s61, s2, 3
            s_add_u32 s61, s61, s{SW}
            s_mul_i32 s61, s61, {21*128}
            v_lshlrev_b32 v1, 7, v0
            v_cmp_gt_u32 vcc, 21, v0
            v_mov_b32 v{V_ONE}, {BIG:#x}
            s_nop 0
            v_cndmask_b32 v1, v{V_ONE}, v1, vcc""")
            a.vmem(f"buffer_load_dword v{V_ONE}, v1, {sr(76,4)}, s61 offen {o.get('tsc','')}","pf")
        if o["pfw"]==0: touch(a,P_WG); touch(a,P_WU)
        phaseA_setup2(a)
        a(f"""s_and_b32 s60, s2, 7
        s_lshr_b32 s61, s2, 3
        s_mul_i32 s62, s60, 30
        s_add_u32 s62, s62, s61
        s_cmp_lt_u32 s62, 234
        s_cselect_b32 s{S_ROLE}, 1, 0
        s_cmp_lt_u32 s61, 30
        s_cselect_b32 s{S_ROLE}, s{S_ROLE}, 0
        s_cmp_lt_u32 s{SW}, 4
        s_cselect_b32 s{S_ROLE}, s{S_ROLE}, 0
        s_mul_hi_u32 s{MB_MT}, s62, {(2**32+8)//9:#x}
        s_mul_i32 s63, s{MB_MT}, 9
        s_sub_u32 s{MB_NT}, s62, s63
        s_sub_u32 s61, s61, 14
        s_cselect_b32 s{S_JOB}, 0, 1
        s_cselect_b32 s61, 0, s61
        s_cmp_lt_u32 s{SW}, 4
        s_cselect_b32 s{S_JOB}, 0, s{S_JOB}
        s_lshl_b32 s61, s61, 3
        s_add_u32 s61, s61, s60
        s_lshl_b32 s61, s61, 2
        s_and_b32 s62, s{SW}, 3
        s_add_u32 s{S_SD}, s61, s62
        s_mul_i32 s{S_LB}, s62, {SSM_LDS}
        s_mul_i32 s60, s{MB_MT}, 80
        s_add_u32 s61, s60, 79
        s_lshr_b32 s60, s60, 7
        s_lshr_b32 s61, s61, 7
        s_min_u32 s60, s60, 15
        s_min_u32 s61, s61, 15
        s_lshl_b32 s60, s60, 7
        s_lshl_b32 s61, s61, 7
        v_and_b32 v12, 15, v0
        v_and_b32 v13, 16, v0
        v_cmp_eq_u32 vcc, 0, v13
        v_mov_b32 v13, s60
        v_mov_b32 v14, s61
        v_cndmask_b32 v13, v14, v13, vcc
        v_lshl_add_u32 v13, v12, 2, v13
        s_lshr_b32 s60, s{S_SD}, 6
        s_lshl_b32 s60, s60, 2
        v_lshl_add_u32 v14, v12, 7, s60
        s_cmp_eq_u32 s{S_ROLE}, 1
        s_cselect_b64 vcc, -1, 0
        v_cndmask_b32 v{V_PO}, v14, v13, vcc
        s_lshl_b32 s60, s{S_MI}, 7
        s_lshl_b32 s61, s{S_FJ}, 2
        s_add_u32 s{S_MI}, s60, s61
        s_cmp_eq_u32 s{SW}, 0
        s_cselect_b32 s60, s{S_MI}, {BIG:#x}
        v_mov_b32 v{V_SIG}, {BIG:#x}
        v_mov_b32 v1, s60
        v_cmp_eq_u32 vcc, 0, v0
        s_lshr_b32 s{S_MI}, s{S_MI}, 7
        s_nop 0
        v_cndmask_b32 v{V_SIG}, v{V_SIG}, v1, vcc""")
        a(f"""v_bfe_u32 v12, v0, 2, 2
        v_and_b32 v13, 3, v0
        v_lshrrev_b32 v14, 4, v0
        v_lshl_add_u32 v15, v14, 2, v13
        v_lshl_add_u32 v15, v15, 3, v12
        v_lshrrev_b32 v16, 1, v12
        v_and_b32 v17, 1, v13
        v_lshl_or_b32 v16, v17, 2, v16
        v_xor_b32 v16, s{SW}, v16
        v_lshlrev_b32 v16, 4, v16
        v_lshl_add_u32 v10, v15, 7, v16
        s_lshl_b32 s60, s{S_FJ}, 1
        s_sub_u32 s61, s60, 10
        s_cmp_ge_u32 s60, 10
        s_cselect_b32 s60, s61, s60
        s_lshl_b32 s60, s60, 14
        v_add_u32 v10, s60, v10
        v_xor_b32 v11, 32, v10
        v_lshl_add_u32 v14, v14, 2, v12
        v_lshlrev_b32 v14, 4, v14
        v_lshl_add_u32 v{V_PD}, v13, 12, v14
        s_lshl_b32 s74, s{S_FJ}, 18
        s_lshl_b32 s60, s{SW}, 15
        s_add_u32 s74, s74, s60
        s_lshl_b32 s60, s{S_MI}, 8
        s_add_u32 s74, s74, s60
        s_add_u32 s75, s74, 0x4000""")
        v=gv; a.wait_vm("g"); srd(a,68,P_WS,8192,G_OFF)
        a(f"v_mov_b32 v{v}, 0")
        for i in range(8): a(f"v_dot2c_f32_bf16 v{v}, v{v+2+i}, v{v+10+i}")
        a("s_nop 2")
        for m in ["row_shr:1 row_mask:0xf","row_shr:2 row_mask:0xf","row_shr:4 row_mask:0xf","row_shr:8 row_mask:0xf","row_bcast:15 row_mask:0xa","row_bcast:31 row_mask:0xc"]:
            a(f"v_add_f32_dpp v{v}, v{v}, v{v} {m} bank_mask:0xf\ns_nop 1")
        a(f"v_mul_f32 v{v}, {f2u(-LOG2E):#x}, v{v}\nv_exp_f32 v{v}, v{v}\ns_nop 0\nv_add_f32 v{v}, 1.0, v{v}\nv_rcp_f32 v{v}, v{v}")
        a(f"s_lshl_b32 s73, s72, 2\nv_mov_b32 v{v+1}, {BIG:#x}\nv_cmp_eq_u32 vcc, 63, v0\ns_nop 1\nv_cndmask_b32 v{v+1}, v{v+1}, 0, vcc")
        a.vmem(f"buffer_store_dword v{v}, v{v+1}, {sr(68,4)}, s73 offen {sc}","gst")
        srd(a,68,P_WS,T_SZ,XT_OFF)
        def win(a,S,kind,slot,regs):
            base=slot*SLOT; w=(base//49152)*49152
            if w!=S.cur[kind]:
                d=w-S.cur[kind]
                for r in regs: a(f"v_add_u32 v{r}, {d&0xffffffff:#x}, v{r}")
                S.cur[kind]=w
            return base-w
        def reads(a,S,n):
            t,st=divmod(n,4); p=t//9
            of=win(a,S,"W",slot_of[("W",t)],[VA0,VA1,VAH]); fb=FR+8*(n%2)
            for cc in range(2 if p<4 else 1):
                va=[VA0,VA1][cc] if p<4 else VAH
                for tt in range(2): a.lds(f"ds_read_b64_tr_b16 {vr(fb+4*cc+2*tt,2)}, v{va} offset:{of+(16*st+4*tt)*128}",("n",n))
            if p==0:
                of=win(a,S,"X",slot_of[("X",t)],[VXR,VXR+1,VXR+2,VXR+3])
                a.lds(f"ds_read_b128 {vr(XF+4*n,4)}, v{VXR+st} offset:{of}",("n",n))
        def drain(a,S,k):
            for _ in range(k):
                if not S.pend: return
                op=S.pend.pop(0)
                if isinstance(op,tuple):
                    _,so,vp,p=op; a(so)
                    a.vmem(f"buffer_store_dwordx4 {vr(vp,4)}, v{VOH}, {sr(S_H,4)}, s{S_T} offen {sc}",("hst",p))
                else: a(op)
        bars=[t for t in range(NST-1) if t<9 or (t-8)%BG==0]
        tC1=min(t for t in bars if t>=28); tC2=min(t for t in bars if t>=37); tF=min(t for t in bars if t>=40); tZ=min(t for t in bars if t>=36)
        def step(a,S,n,side=0,post_bar=None):
            t,st=divmod(n,4); p,tt=divmod(t,9); kn=n-36*p
            if p==0 and st==0:
                sk=s.lab("xt")
                a(f"s_cmp_lg_u32 s{S_FJ}, {t}\ns_cbranch_scc1 {sk}")
                for u in range(2): a(f"ds_read_b64_tr_b16 {vr(12+4*u,2)}, v10 offset:{8*u}\nds_read_b64_tr_b16 {vr(14+4*u,2)}, v11 offset:{8*u+512}")
                a(f"s_waitcnt lgkmcnt(0)\nbuffer_store_dwordx4 v[12:15], v{V_PD}, s[68:71], s74 offen {sc}\nbuffer_store_dwordx4 v[16:19], v{V_PD}, s[68:71], s75 offen {sc}\n{sk}:")
            last=(n==NST*4-1)
            if st==3 and t in bars:
                a.wait_lg(("n",n))
                a.wait_vm(("st",min(NST-1,t+(1 if t<8 else BG))))
                if t==tC1: a.wait_vm(("hst",1))
                if t==tC2: a.wait_vm(("hst",2))
                a("s_barrier")
                if o.get("p0") and t<8: s.st(a,100+t)
                S.freeq+=sum(2 if q<9 else 1 for q in range(S.freed,t+1)); S.freed=t+1
                if t==tC1: s.signal(a,0)
                if t==tC2: s.signal(a,2048); s.poll_issue(a,0)
                if t==tZ: a(f"v_mov_b32 v1, {SYNC}\nv_mov_b32 v10, 0\nv_mov_b32 v11, 0"); a.lds("ds_write_b64 v1, v[10:11]","z")
                if post_bar and t==tF: return post_bar()
            step2(a,S,n,side)
        def step2(a,S,n,side):
            t,st=divmod(n,4); p,tt=divmod(t,9); kn=n-36*p; last=(n==NST*4-1)
            free=min(S.freeq,2 if t<10 else 1); S.freeq-=free
            if not last: reads(a,S,n+1)
            a.wait_lg(("n",n))
            if last: a("s_barrier")
            fb=FR+8*(n%2); acc=ACC[p%2]
            for cc in range(2 if p<4 else 1):
                d=vr(acc+16*cc,16)
                a(f"v_mfma_f32_32x32x16_bf16 {d}, {vr(fb+4*cc,4)}, {vr(XF+4*kn,4)}, {d if kn else 0}")
                if cc==0:
                    for _ in range(free): issue_item(a,S)
                if kn>=3: drain(a,S,2 if p<4 else 4)
            for _ in range(side):
                if S.side: S.side.pop(0)(kn)
            if n in TS:
                a(f"s_mov_b64 exec, {TS[n][1]:#x}"); a.vmem(f"buffer_load_dword v26, v27, {sr(TS[n][0],4)}, s39 offen","pf"); a("s_mov_b64 exec, -1")
            if n==4*11: a("v_mov_b32 v10, 0"); s.poll_issue(a,0,vo=10)
            if n==4*20:
                s.poll_check(a,0,0,vo=10,cmp="eq"); a(f"v_readfirstlane_b32 s{S_NON}, v{V_PD}"); srd(a,S_DBG,P_WS,8192,FL_OFF)
            if o["pfd"] is not None and n==4*o["pfd"]: touch(a,P_WD)
            if o["pfw"] and n==round(4*o["pfw"])-1: touch(a,P_WG)
            if o["pfw"] and n==round(4*o["pfw"]): touch(a,P_WU)
            if kn==35:
                assert not S.pend
                so=[f"s_add_u32 s{S_T}, s{S_FC}, {p*2048+cc*512}" for cc in range(2)] if p<4 else [f"s_mov_b32 s{S_T}, s{S_FCH}"]
                S.pend=[x+(p,) if isinstance(x,tuple) else x for x in silu_ops(acc,2 if p<4 else 1,so,sc)]
                s.st(a,6+p)
        TS={}
        if o.get("spr"):
            n0,dn,K=o["spr"]; i=0
            srd(a,76,P_WG,4608*1152); srd(a,60,P_WU,4608*1152)
            a(f"s_lshl_b32 s39, s2, 3\ns_add_u32 s39, s39, s{SW}\ns_mul_i32 s39, s39, {21*128}\nv_lshlrev_b32 v27, 7, v0")
            for k in range(K):
                lo,hi=21*k//K,21*(k+1)//K
                for sd in (76,60): TS[n0+dn*i]=(sd,((1<<hi)-1)^((1<<lo)-1)); i+=1
            assert max(TS)<4*o["pfd"] and max(TS)<50
        a.wait_vm(("st",0)); a("s_barrier")
        s.st(a,11); S.freeq=10-o.get('ini',10)
        reads(a,S,0)
        nF=4*tF+3
        for n in range(nF): step(a,S,n)
        step(a,S,nF,post_bar=lambda:None)
        assert S.nxt==len(items)
        a(f"s_cmp_eq_u32 s{S_ROLE}, 0\ns_cbranch_scc1 Lsrole")
        a2=A(); a2.vm=list(a.vm); a2.lg=list(a.lg); S2=copy.deepcopy(S)
        s.poll_check(a,0)
        C=b_chunks(); N=36
        def issue_w(n,i):
            if n>=N: return
            if i==0: a(f"s_add_u32 m0, s{MB_M0}, {(n%NS)*4096}\ns_add_u32 s{MB_T2}, s{MB_BW}, {C[n]*36864}")
            a.vmem(f"buffer_load_dwordx4 v{M_VW+i}, {sr(MB_W,4)}, s{MB_T2} offen offset:{1024*i} lds",("W",n))
        def issue_h(n,j,kn=99):
            if n>=N: return
            assert M_HB+20*(n%PD)+4*j+3 < XF+4*kn, (n,j,kn)
            if j==0: a(f"s_add_u32 s{MB_T}, s{MB_BH}, {C[n]*1024}")
            a.vmem(f"buffer_load_dwordx4 {vr(M_HB+20*(n%PD)+4*j,4)}, v{M_VH+j}, {sr(MB_H,4)}, s{MB_T} offen {o.get('sch',sc)}",("h",n))
        a(f"s_mov_b32 s{MB_KQ}, s{SW}"); srd(a,MB_W,P_WD,4608*1152)
        a(f"""s_mul_i32 s{MB_BH}, s{MB_KQ}, {36*1024}
        s_mul_i32 s{MB_BW}, s{MB_KQ}, {36*36864}
        s_mul_i32 s{MB_M0}, s{MB_KQ}, {NS*4096}
        s_add_u32 s{MB_M0}, s{MB_M0}, {RINGB}
        v_lshrrev_b32 v31, 3, v0
        v_bfe_u32 v1, v0, 1, 2
        v_bfe_u32 v{M_VW+1}, v0, 4, 2
        v_xor_b32 v1, v1, v{M_VW+1}
        v_and_b32 v{M_VW+1}, 1, v0
        v_lshlrev_b32 v{M_VW+1}, 4, v{M_VW+1}
        v_lshl_add_u32 v1, v1, 5, v{M_VW+1}
        v_mul_u32_u24 v31, 1152, v31
        s_lshl_b32 s60, s{MB_NT}, 7
        v_add3_u32 v{M_VW}, v1, v31, s60""")
        for i in range(1,4): a(f"v_add_u32 v{M_VW+i}, {8192*i}, v{M_VW}")
        def sh(kn):
            a(f"s_mul_i32 s60, s{MB_MT}, {5*147456}\nv_lshl_add_u32 v{M_VH}, v0, 4, s60")
            for j in range(1,5): a(f"v_add_u32 v{M_VH+j}, {147456*j}, v{M_VH}")
        S.side=[(lambda kn,i=i:issue_w(0,i)) for i in range(4)]+[sh]
        for n in range(PD):
            S.side+=[(lambda kn,n=n,j=j:issue_h(n,j,kn)) for j in range(5)]+[(lambda kn,n=n,i=i:issue_w(n+1,i)) for i in range(4)]
        step2(a,S,nF,o["side"])
        for n in range(nF+1,NST*4): step(a,S,n,side=o["side"])
        a(f"""v_bfe_u32 v1, v0, 2, 3
        v_lshrrev_b32 v31, 5, v0
        v_lshl_add_u32 v31, v31, 4, v1
        v_lshrrev_b32 v1, 1, v1
        v_lshlrev_b32 v1, 5, v1
        v_lshl_add_u32 v1, v31, 7, v1
        v_and_b32 v31, 3, v0
        v_lshl_add_u32 v1, v31, 3, v1
        v_add_u32 v{M_VR}, s{MB_M0}, v1""")
        for d in range(1,4): a(f"v_xor_b32 v{M_VR+d}, {32*d}, v{M_VR}")
        a("s_nop 3")
        while S.pend or S.side:
            drain(a,S,3)
            if S.side: S.side.pop(0)(99)
        s.st(a,1); s.st(a,17,clk=True); s.st(a,4); s.st(a,18,clk=True)
        def breads(n):
            for d in range(4):
                for t in range(2): a.lds(f"ds_read_b64_tr_b16 {vr(M_FR+16*(n%2)+4*d+2*t,2)}, v{M_VR+d} offset:{(n%NS)*4096+1024*t}",("f",n))
        a.wait_vm(("W",0)); breads(0)
        srd(a,MB_O,P_OUT,2048*1152); srd(a,MB_A,P_WS,T_SZ,AT_OFF); srd(a,MB_G,P_WS,8192,G_OFF)
        aslot=(N-NS)%NS
        def setup3():
            a(f"""s_lshl_b32 s60, s{MB_NT}, 6
            s_lshl_b32 s61, s{MB_KQ}, 4
            s_add_u32 s60, s60, s61
            s_lshl_b32 s61, s60, 12
            s_mul_i32 s62, s{MB_MT}, 160
            s_add_u32 s61, s61, s62""")
            for i in range(3):
                a(f"""v_add_u32 v1, {64*i}, v0
                v_mul_u32_u24 v12, 6554, v1
                v_lshrrev_b32 v12, 16, v12
                v_mul_u32_u24 v{M_VAD+i}, {4096-160}, v12
                v_lshl_add_u32 v{M_VAD+i}, v1, 4, v{M_VAD+i}
                v_add_u32 v{M_VAD+i}, s61, v{M_VAD+i}""")
            a(f"v_cmp_gt_u32 vcc, 32, v0\nv_mov_b32 v1, {BIG:#x}\ns_nop 0\nv_cndmask_b32 v{M_VAD+2}, v1, v{M_VAD+2}, vcc")
            a(f"""v_lshrrev_b32 v1, 2, v0
            v_mul_u32_u24 v1, 160, v1
            v_and_b32 v12, 3, v0
            v_lshl_add_u32 v1, v12, 3, v1
            v_add_u32 v{M_VAR}, s{MB_M0}, v1
            s_mul_i32 s62, s{MB_MT}, 80
            v_and_b32 v1, 15, v0
            v_add_u32 v1, s62, v1
            v_lshlrev_b32 v{M_G}, 2, v1
            v_mul_u32_u24 v1, 1152, v1
            v_lshrrev_b32 v12, 4, v0
            v_lshl_add_u32 v1, v12, 3, v1
            s_lshl_b32 s60, s60, 1
            v_add_u32 v{M_VO}, s60, v1
            v_lshl_add_u32 v{M_VRED}, v0, 4, s{MB_M0}
            s_lshl_b32 s60, s{MB_NT}, 7
            s_add_u32 s60, s60, {3*2048}
            v_and_b32 v13, 15, v0
            v_lshl_add_u32 v13, v13, 2, s60
            v_add_u32 v{V_SIG}, 2048, v{V_PO}""")
        ATR=M_HB+20*((N-PD)%PD)
        for n in range(N):
            a.wait_vm(("h",n)); a.wait_vm(("W",n+1))
            if n==o["arr"]:
                a.wait_vm(("hst",4)); a(f"s_lshl_b32 s60, s{S_MI}, 7\ns_lshl_b32 s61, s{S_FJ}, 2\ns_add_u32 s60, s60, s61\ns_add_u32 s60, s60, 4096"); s.arrive(a,0,7,"s60",14)
            if n==o["c2"][1]: s.poll_check(a,2048)
            if n==o["c3"][1]: s.poll_check(a,2048,vo=V_SIG)
            if n==o["at"][1]:
                s.st(a,12)
                s.poll_check(a,0,vo=13)
                if not o.get('sst'): s.st(a,13)
                for i in range(3): a.vmem(f"buffer_load_dwordx4 {vr(ATR+4*i,4)}, v{M_VAD+i}, {sr(MB_A,4)}, 0 offen {sc}","at")
                for j in range(4,-1,-1): a.vmem(f"buffer_load_dword v{M_G+j}, v{M_G}, {sr(MB_G,4)}, 0 offen offset:{64*j} {sc}","at")
            a.wait_lg(("f",n))
            if n+1<N: breads(n+1)
            if n==o["c2"][0]: s.poll_issue(a,2048)
            if n==o["c3"][0]: s.poll_issue(a,2048,vo=V_SIG)
            if n==o["at"][0]: s.poll_issue(a,0,vo=13)
            for j in range(5):
                for d in range(4):
                    acc=vr(M_ACC[j]+4*d,4)
                    a(f"v_mfma_f32_16x16x32_bf16 {acc}, {vr(M_FR+16*(n%2)+4*d,4)}, {vr(M_HB+20*(n%PD)+4*j,4)}, {acc if n else 0}")
                    if j<4 and d==0: issue_w(n+NS,j)
                issue_h(n+PD,j)
            if n==1: setup3()
        assert o["at"][1]>N-PD
        a.wait_vm("at")
        for i in range(3): a(f"ds_write_b128 v{M_VRED}, {vr(ATR+4*i,4)} offset:{aslot*4096+1024*i}")
        a("s_waitcnt lgkmcnt(0)")
        for j in range(5): a(f"ds_read_b64_tr_b16 {vr(M_AT+2*j,2)}, v{M_VAR} offset:{aslot*4096+32*j}")
        a("s_waitcnt lgkmcnt(0)"); a.lg=[]
        for k in range(4):
            lb=s.lab("w")
            a(f"s_cmp_lg_u32 s{MB_KQ}, {k}\ns_cbranch_scc1 {lb}")
            for d in range(4):
                if d==k: continue
                for j in range(5): a(f"ds_write_b128 v{M_VRED}, {vr(M_ACC[j]+4*d,4)} offset:{(d*5+j)*1024}")
            for j in range(5):
                for i in range(4):
                    if k: a(f"v_mov_b32 v{M_ACC[j]+i}, v{M_ACC[j]+4*k+i}")
            a(f"{lb}:")
        a(f"s_mul_i32 s60, s{MB_KQ}, 5120\ns_add_u32 s60, s60, {RINGB}\nv_lshl_add_u32 v1, v0, 4, s60\ns_waitcnt lgkmcnt(0)\ns_barrier")
        for q in range(1,4):
            a(f"s_add_u32 s60, s{MB_KQ}, {q}\ns_and_b32 s60, s60, 3\ns_mul_i32 s60, s60, {NS*4096}\nv_add_u32 v12, s60, v1")
            for j in range(5): a.lds(f"ds_read_b128 {vr(M_HB+20*(q-1)+4*j,4)}, v12 offset:{j*1024}",("r",q))
        for q in range(1,4):
            a.wait_lg(("r",q))
            for j in range(5):
                for i in range(0,4,2): a(f"v_pk_add_f32 {vr(M_ACC[j]+i,2)}, {vr(M_ACC[j]+i,2)}, {vr(M_HB+20*(q-1)+4*j+i,2)}")
        for j in range(5):
            b=M_ACC[j]; t=b+4; u=M_AT+2*j
            a(f"v_lshlrev_b32 v{t}, 16, v{u}\nv_and_b32 v{t+1}, 0xffff0000, v{u}\nv_lshlrev_b32 v{t+2}, 16, v{u+1}\nv_and_b32 v{t+3}, 0xffff0000, v{u+1}")
            for i in range(4): a(f"v_sub_f32 v{t+i}, v{t+i}, v{b+i}")
            for i in range(4): a(f"v_fmac_f32 v{b+i}, v{M_G+j}, v{t+i}")
            a(f"v_cvt_pk_bf16_f32 v{b}, v{b}, v{b+1}\nv_cvt_pk_bf16_f32 v{b+1}, v{b+2}, v{b+3}\ns_mov_b32 s60, {16*1152*j}")
            a.vmem(f"buffer_store_dwordx2 {vr(b,2)}, v{M_VO}, {sr(MB_O,4)}, s60 offen {o.get('osc','')}","o")
        s.st(a,5); s.st(a,19,clk=True)
        a("s_endpgm")
        b=a2; b("Lsrole:")
        s.poll_check(b,0)
        ssm_params(b,S_SD,64)
        step2(b,S2,nF,0)
        for n in range(nF+1,NST*4): step(b,S2,n)
        b("s_nop 15"); drain(b,S2,1000)
        b("s_waitcnt vmcnt(0)"); b.vm=[]
        b(f"s_lshl_b32 s60, s{S_MI}, 7\ns_lshl_b32 s61, s{S_FJ}, 2\ns_add_u32 s60, s60, s61\ns_add_u32 s60, s60, 4096"); s.arrive(b,0,7,"s60",14)
        b(f"s_cmp_eq_u32 s{S_JOB}, 0\ns_cbranch_scc1 {END}")
        if o["prio"]: b(f"s_setprio {o['prio']}")
        s.st(b,2)
        for i in range(8): b(f"v_mov_b32 v{2+i}, v{64+i}")
        parts.OPT['pk']=o.get('pk'); ssm_wave(b,S_SD,S_LB,sc_ld=sc,sc_st=sc,params=False,st=(lambda k:s.st(b,(14,15,13)[k],vt=(250,251))) if o.get('sst') else None)
        b("s_waitcnt vmcnt(0)")
        b(f"s_lshr_b32 s60, s{S_SD}, 6\ns_lshl_b32 s60, s60, 7\ns_bfe_u32 s61, s{S_SD}, 0x40002\ns_lshl_b32 s61, s61, 2\ns_add_u32 s60, s60, s61\ns_add_u32 s60, s60, {3*2048}"); s.arrive(b,1,3,"s60",14)
        s.st(b,3)
        txt="\n".join(hdr+["; @launch grid=(256,1,1) block=(512,1,1) lds=163840"])+'\n.amdgcn_target "amdgcn-amd-amdhsa--gfx950"\n.text\n'+kernel_head(KN)+a.text()+b.text()+f"{END}:\ns_endpgm\n"+'.section .rodata,"a"\n'+kernel_desc(KN,256)
        open(out,"w").write(txt)
if __name__=="__main__":
    G().gen("m.s"); G(stamps=True).gen("ms.s")
    V=eval(sys.argv[1]) if len(sys.argv)>1 else []
    for nm,o in zip("abcdefgh",V):
        G(stamps=True,**o).gen(f"x_{nm}.s"); G(**o).gen(f"y_{nm}.s")
```
